```python
import torch

def _softmax(x, axis=-1):
    return torch.softmax(x, dim=axis)
def _gelu(x):
    return torch.nn.functional.gelu(x, approximate="tanh")
def _silu(x):
    return torch.nn.functional.silu(x)
def _sigmoid(x):
    return torch.sigmoid(x)
def _layernorm(x, axis=-1, eps=1e-5):
    m = x.mean(dim=axis, keepdim=True)
    v = x.var(dim=axis, keepdim=True, unbiased=False)
    return (x - m) / torch.sqrt(v + eps)
def _scatter_add(tgt, idx, src, axis=0):
    return tgt.clone().index_add_(axis, idx, src)
def _segment_sum(src, seg, n):
    out = torch.zeros((n,) + src.shape[1:], dtype=src.dtype)
    return out.index_add_(0, seg, src)
def _pad(x, pw):
    flat = tuple(v for pair in reversed(pw) for v in pair)
    return torch.nn.functional.pad(x, flat)

kernel_name = 'gated_mix__grouped_kv_mqa__mixer_token_mlp__prompt'

def setup_inputs():

    _w = (lambda a: (lambda t: t.to(torch.bfloat16) if t.is_floating_point() else t)(torch.as_tensor(a)))
    def _A_setup():
        B, S, D, H = 1, 2048, 448, 16
        Dh = D // H
        return {
            "x": _w((lambda *s: torch.randn(*s, dtype=torch.bfloat16) * 0.05)(B, S, D)),
            "wq": _w((lambda *s: torch.randn(*s, dtype=torch.bfloat16) * 1.6)(D, H * Dh)),
            "wk": _w((lambda *s: torch.randn(*s, dtype=torch.bfloat16) * 1.6)(D, Dh)),
            "wv": _w((lambda *s: torch.randn(*s, dtype=torch.bfloat16) * 0.05)(D, Dh)),
            "wo": _w((lambda *s: torch.randn(*s, dtype=torch.bfloat16) * 0.05)(H * Dh, D)),
        }
    _A_in = _A_setup()

    def _B_setup():
        B, S, D, F = 1, 2048, 448, 1792
        return {
            "x": _w((lambda *s: torch.randn(*s, dtype=torch.bfloat16) * 0.05)(B, S, D)),
            "w1": _w((lambda *s: torch.randn(*s, dtype=torch.bfloat16) * 0.8)(S, F) * (S ** -0.5)),
            "b1": _w((lambda *s: torch.randn(*s, dtype=torch.bfloat16) * 12.8)(F) * 0.02),
            "w2": _w((lambda *s: torch.randn(*s, dtype=torch.bfloat16) * 0.05)(F, S) * (F ** -0.5)),
            "b2": _w((lambda *s: torch.randn(*s, dtype=torch.bfloat16) * 0.4)(S) * 0.02),
        }
    _B_in = _B_setup()

    return {
        "A_x": _A_in["x"],
        "A_wq": _A_in["wq"],
        "A_wk": _A_in["wk"],
        "A_wv": _A_in["wv"],
        "A_wo": _A_in["wo"],
        "B_x": _B_in["x"],
        "B_w1": _B_in["w1"],
        "B_b1": _B_in["b1"],
        "B_w2": _B_in["w2"],
        "B_b2": _B_in["b2"],
        "gate_w": _w((lambda *s: torch.randn(*s, dtype=torch.bfloat16) * 0.05)(448) * 16.0),
    }

def reference(A_x, A_wq, A_wk, A_wv, A_wo, B_x, B_w1, B_b1, B_w2, B_b2, gate_w):
    def _A_ref(x, wq, wk, wv, wo):
        B, S, D = x.shape
        H = 16
        Dh = D // H
        q = (lambda x, *d: x.permute(*d))((x @ wq).reshape(B, S, H, Dh), 0, 2, 1, 3)
        k = x @ wk
        v = x @ wv
        scores = torch.einsum("bhqd,bkd->bhqk", q, k) * (Dh ** -0.5)
        p = _softmax(scores, axis=-1)
        o = torch.einsum("bhqk,bkd->bhqd", p, v)
        return (lambda x, *d: x.permute(*d))(o, 0, 2, 1, 3).reshape(B, S, H * Dh) @ wo

    def _B_ref(x, w1, b1, w2, b2):
        B, S, D = x.shape
        h = _layernorm(x, axis=-1)
        u = torch.einsum("bsd,sf->bdf", h, w1) + b1
        u = _gelu(u)
        y = torch.einsum("bdf,fs->bds", u, w2) + b2
        return (lambda x, *d: x.permute(*d))(y, 0, 2, 1)

    x = A_x
    g = _sigmoid((x * gate_w).sum(-1, keepdims=True))
    a = _A_ref(x, A_wq, A_wk, A_wv, A_wo)
    b = _B_ref(x, B_w1, B_b1, B_w2, B_b2)
    return g * a + (1 - g) * b
```

```python
import struct
NAME = "gated_mix__grouped_kv_mqa__mixer_token_mlp__prompt"
QF, KV, HT, GG, UU, OF, WS_END = 0, 0x200000, 0x240000, 0x400000, 0x410000, 0x600000, 0x800000
ST = 0x900000

def f2u(x): return struct.unpack('<I', struct.pack('<f', x))[0]
def hx(x): return "0x%x" % f2u(x)

class Asm:
    def __init__(s): s.l = []
    def __call__(s, t):
        for x in t.strip().split("\n"):
            x = x.strip()
            if x: s.l.append(x if x.endswith(":") else "    " + x)
    def text(s): return "\n".join(s.l) + "\n"

def R(b, n): return "v[%d:%d]" % (b, b + n - 1)
def srd(a, d, b, nbytes):
    a(f"s_mov_b32 s{d}, s{b}\ns_mov_b32 s{d+1}, s{b+1}\ns_mov_b32 s{d+2}, {nbytes}\ns_mov_b32 s{d+3}, 0x20000")
def S4(d): return "s[%d:%d]" % (d, d + 3)
def mfma(a, d, x, y, c):
    a(f"v_mfma_f32_32x32x16_bf16 {R(d,16)}, {R(x,4)}, {R(y,4)}, {'0' if c is None else R(c,16)}")
def head(a, name):
    a(f".globl {name}\n.p2align 8\n.type {name},@function\n{name}:")
def desc(name, vgpr):
    return (f".amdhsa_kernel {name}\n  .amdhsa_next_free_vgpr {vgpr}\n  .amdhsa_next_free_sgpr 96\n"
            f"  .amdhsa_accum_offset {min(256,(vgpr+3)//4*4)}\n  .amdhsa_group_segment_fixed_size 0\n"
            "  .amdhsa_kernarg_size 112\n  .amdhsa_user_sgpr_count 2\n"
            "  .amdhsa_user_sgpr_kernarg_segment_ptr 1\n  .amdhsa_system_sgpr_workgroup_id_x 1\n"
            ".end_amdhsa_kernel\n")

DIAG = False
def stamp(a, k):
    if DIAG: a(f"s_memrealtime s[{60+2*k}:{61+2*k}]")
def stamp_out(a, kern, n, wavereg, ws):
    if not DIAG: return
    a(f"s_memrealtime s[{60+2*n}:{61+2*n}]\ns_waitcnt lgkmcnt(0)")
    a(f"s_lshl_b32 s90, s2, 3\ns_add_u32 s90, s90, s{wavereg}\ns_lshl_b32 s90, s90, 5")
    a(f"s_add_u32 s90, s90, {ST + kern*0x20000}\ns_mov_b32 s{ws+2}, 0x1000000\ns_mov_b64 exec, 1\nv_mov_b32 v1, 0")
    for k in range(n + 1):
        a(f"v_mov_b32 v0, s{60+2*k}\nbuffer_store_dword v0, v1, {S4(ws)}, s90 offen offset:{4*k}")

def tr_addr(a, dst, lane, tmp, base_s, sel_s):
    a(f"""v_lshrrev_b32 v{tmp}, 5, v{lane}
    v_lshlrev_b32 v{dst}, 9, v{tmp}
    v_bfe_u32 v{tmp}, v{lane}, 2, 2
    v_lshl_add_u32 v{dst}, v{tmp}, 7, v{dst}
    v_lshrrev_b32 v{tmp}, 1, v{tmp}
    v_xor_b32 v{tmp}, s{sel_s}, v{tmp}
    v_lshl_add_u32 v{dst}, v{tmp}, 6, v{dst}
    v_bfe_u32 v{tmp}, v{lane}, 4, 1
    v_lshl_add_u32 v{dst}, v{tmp}, 5, v{dst}
    v_and_b32 v{tmp}, 3, v{lane}
    v_lshl_add_u32 v{dst}, v{tmp}, 3, v{dst}
    v_add_u32 v{dst}, s{base_s}, v{dst}
    v_xor_b32 v{dst+1}, 64, v{dst}""")

def dma_voff(a, dst, lane, tmp, stride, sreg):
    a(f"""v_lshrrev_b32 v{tmp}, 3, v{lane}
    s_mov_b32 s{sreg}, {stride}
    v_mul_lo_u32 v{dst}, v{tmp}, s{sreg}
    v_lshlrev_b32 v{tmp}, 1, v{tmp}
    v_and_b32 v{tmp}, 4, v{tmp}
    v_xor_b32 v{tmp}, v{tmp}, v{lane}
    v_and_b32 v{tmp}, 7, v{tmp}
    v_lshl_add_u32 v{dst}, v{tmp}, 4, v{dst}
    v_add_u32 v{dst+1}, {8*stride-1024}, v{dst}""")

def gemm_steps(a, steps, RD, ACC, TR, DIR, ring_s, pre_vm=0):
    n = len(steps)
    def issue(i):
        st = steps[i]; sl = i % RD
        sd, vo, so, inc = st['dma']; flag = st.get('flag', '')
        a(f"s_add_u32 m0, s{ring_s}, {sl*2048}")
        d2, v2, s2, inc2 = st['dir']
        a(f"buffer_load_dwordx4 {R(DIR+8*sl,4)}, v{v2}, {S4(d2)}, s{s2} offen")
        a(f"buffer_load_dwordx4 v{vo}, {S4(sd)}, s{so} offen {flag} lds")
        a(f"buffer_load_dwordx4 {R(DIR+8*sl+4,4)}, v{v2+1}, {S4(d2)}, s{s2} offen")
        a(f"buffer_load_dwordx4 v{vo+1}, {S4(sd)}, s{so} offen offset:1024 {flag} lds")
        a(f"s_add_u32 s{so}, s{so}, {inc}\ns_add_u32 s{s2}, s{s2}, {inc2}")
    def trread(i, issued):
        a(f"s_waitcnt vmcnt({4*(issued-1-i)})")
        sl = i % RD; t = TR + 8*(i & 1); ad = steps[i]['tra']
        for blk in range(2):
            for hf in range(2):
                a(f"ds_read_b64_tr_b16 {R(t+4*blk+2*hf,2)}, v{ad+blk} offset:{sl*2048+hf*1024}")
    for i in range(min(RD, n)): issue(i)
    issued = min(RD, n)
    trread(0, issued)
    for i in range(n):
        st = steps[i]; sl = i % RD
        if i + 1 < n:
            trread(i + 1, issued); a("s_waitcnt lgkmcnt(4)")
        else: a("s_waitcnt lgkmcnt(0)")
        if 'before' in st: st['before']()
        t = TR + 8*(i & 1); d = DIR + 8*sl
        A_, B_ = (t, d) if st['a_is_tr'] else (d, t)
        for j in range(4):
            mfma(a, ACC+16*j, A_+4*(j >> 1), B_+4*(j & 1), None if i == 0 else ACC+16*j)
        if issued < n:
            issue(issued); issued += 1

def red_write(a, ACC, vaddr):
    for j in range(1, 4):
        for g in range(4):
            a(f"ds_write_b128 v{vaddr}, {R(ACC+16*j+4*g,4)} offset:{j*4096+g*1024}")
def red_read(a, ACC, vaddr3):
    for j in range(1, 4):
        for g in range(4):
            a(f"ds_read_b128 {R(ACC+16*j+4*g,4)}, v{vaddr3+j-1} offset:{j*4096+g*1024}")
    for j in range(1, 4):
        a(f"s_waitcnt lgkmcnt({4*(3-j)})")
        for r in range(0, 16, 2):
            a(f"v_pk_add_f32 {R(ACC+r,2)}, {R(ACC+r,2)}, {R(ACC+16*j+r,2)}")
def red_addr(a, dst, lane, w_s, base, stride, tmp_s):
    for j in range(4):
        a(f"s_xor_b32 s{tmp_s}, s{w_s}, {j}\ns_mul_i32 s{tmp_s}, s{tmp_s}, {stride}\ns_add_u32 s{tmp_s}, s{tmp_s}, {base}")
        a(f"v_lshl_add_u32 v{dst+j}, v{lane}, 4, s{tmp_s}")
```

```python
from gen_common import *
import math
XL, WQL, WKL, K1_LDS = 0, 29184, 129536, 155648

def proj_loop(a, stride, swap):
    D = 4
    def rd(ks):
        b = 32 + 8*(ks % D); base = 11 + ks // 14; o = (ks % 14)*16*stride
        a(f"ds_read_b128 {R(b,4)}, v10 offset:{32*ks}")
        a(f"ds_read_b64_tr_b16 {R(b+4,2)}, v{base} offset:{o}")
        a(f"ds_read_b64_tr_b16 {R(b+6,2)}, v{base} offset:{o+4*stride}")
    for ks in range(D - 1): rd(ks)
    for ks in range(28):
        if ks + D - 1 < 28: rd(ks + D - 1)
        a(f"s_waitcnt lgkmcnt({3*min(D-1, 27-ks)})")
        b = 32 + 8*(ks % D)
        x, y = (b, b+4) if swap else (b+4, b)
        mfma(a, 16, x, y, None if ks == 0 else 16)
    a("s_nop 7\ns_nop 4")

def w_addr(a, stride, base_expr_s):
    a(f"""v_lshrrev_b32 v3, 5, v1
    v_lshlrev_b32 v3, 3, v3
    v_bfe_u32 v4, v1, 2, 2
    v_add_u32 v3, v3, v4
    v_mul_u32_u24 v11, {stride}, v3
    v_bfe_u32 v4, v1, 4, 1
    v_lshl_add_u32 v11, v4, 5, v11
    v_and_b32 v4, 3, v1
    v_lshl_add_u32 v11, v4, 3, v11
    v_add_u32 v11, s{base_expr_s}, v11
    v_add_u32 v12, {14*16*stride}, v11""")

def pack_store(a, soff):
    for r in range(8): a(f"v_cvt_pk_bf16_f32 v{32+r}, v{16+2*r}, v{17+2*r}")

def rowsum16(a, v):
    for sh in (8, 4, 2, 1):
        a(f"s_nop 1\nv_add_f32_dpp v{v}, v{v}, v{v} row_ror:{sh} row_mask:0xf bank_mask:0xf")

def k1(a):
    head(a, "k1_kernel")
    a("s_cmp_ge_u32 s2, 256\ns_cbranch_scc1 K1_END")
    stamp(a, 0)
    a("""s_load_dwordx4 s[4:7], s[0:1], 0
    s_load_dwordx4 s[8:11], s[0:1], 16
    s_load_dwordx2 s[12:13], s[0:1], 80
    s_load_dwordx2 s[14:15], s[0:1], 104
    v_lshrrev_b32 v2, 6, v0
    v_and_b32 v1, 63, v0
    s_and_b32 s17, s2, 7
    v_readfirstlane_b32 s16, v2
    s_lshl_b32 s17, s17, 3
    s_lshr_b32 s18, s2, 5
    s_add_u32 s17, s17, s18
    s_bfe_u32 s18, s2, 0x20003
    v_lshlrev_b32 v2, 4, v1
    s_lshl_b32 s40, s17, 5
    s_lshl_b32 s41, s16, 2
    s_add_u32 s40, s40, s41
    s_mul_i32 s40, s40, 896
    s_mul_i32 s41, s41, 912
    v_mul_u32_u24 v3, 4682, v0
    v_lshrrev_b32 v3, 16, v3
    v_mul_u32_u24 v4, 14, v3
    v_sub_u32 v4, v0, v4
    v_mul_u32_u24 v5, 896, v3
    v_lshl_add_u32 v5, v4, 4, v5
    s_mul_i32 s42, s18, 224
    s_lshl_b32 s43, s16, 10
    s_waitcnt lgkmcnt(0)""")
    srd(a, 20, 4, 2048*896); srd(a, 24, 6, 448*896); srd(a, 36, 14, WS_END)
    a("s_mov_b32 exec_hi, 0xffffff")
    for r in range(4):
        a(f"s_add_u32 m0, s41, {XL+r*912}\ns_add_u32 s44, s40, {r*896}\nbuffer_load_dwordx4 v2, s[20:23], s44 offen lds")
    a("s_mov_b32 exec_hi, -1")
    a("s_cmp_lt_u32 s16, 4\ns_cbranch_scc1 K1_WQ\ns_cmp_lt_u32 s18, 2\ns_cbranch_scc1 K1_NOLN0")
    srd(a, 32, 12, 896)
    a("""s_sub_u32 s45, s16, 4
    s_lshl_b32 s45, s45, 2
    v_lshrrev_b32 v6, 4, v1
    v_add_u32 v6, s45, v6
    v_and_b32 v7, 15, v1
    v_lshlrev_b32 v7, 3, v7
    v_mul_u32_u24 v8, 896, v6
    v_add_u32 v8, v8, v7
    s_lshl_b32 s46, s17, 1
    s_add_u32 s46, s46, s18
    s_sub_u32 s46, s46, 2
    s_mul_i32 s47, s46, 14336""")
    for i in range(7): a(f"buffer_load_dwordx2 {R(16+2*i,2)}, v8, s[20:23], s47 offen offset:{128*i}")
    for i in range(7): a(f"buffer_load_dwordx2 {R(64+2*i,2)}, v7, s[32:35], 0 offen offset:{128*i}")
    a("K1_NOLN0:\ns_cmp_eq_u32 s16, 7\ns_cbranch_scc1 K1_W7")
    a("K1_WQ:")
    for i in range(14):
        a(f"s_add_u32 m0, s43, {WQL+i*7168}\ns_add_u32 s44, s42, {i*28672}\nbuffer_load_dwordx4 v5, s[24:27], s44 offen lds")
    a("s_cmp_lt_u32 s16, 4\ns_cbranch_scc1 K1_BAR\ns_cmp_lt_u32 s18, 2\ns_cbranch_scc1 K1_BAR\ns_waitcnt vmcnt(14)\ns_branch K1_LN")
    a("K1_W7:\ns_cmp_ge_u32 s18, 2\ns_cbranch_scc1 K1_LN0")
    a("s_cmp_eq_u32 s18, 0\ns_cselect_b32 s28, s8, s10\ns_cselect_b32 s29, s9, s11\ns_mov_b32 s30, 25088\ns_mov_b32 s31, 0x20000")
    for i in range(25):
        if i % 4 == 0: a(f"s_mov_b32 m0, {WKL+i*1024}\ns_mov_b32 s44, {i*1024}")
        a(f"buffer_load_dwordx4 v2, s[28:31], s44 offen offset:{(i%4)*1024} lds")
    a("s_branch K1_BAR")
    a("K1_LN0:\ns_waitcnt vmcnt(0)")
    a("K1_LN:")
    a("v_mov_b32 v62, 0\nv_mov_b32 v60, 0\nv_mov_b32 v61, 0")
    for i in range(14):
        a(f"v_lshlrev_b32 v{32+2*i}, 16, v{16+i}\nv_and_b32 v{33+2*i}, 0xffff0000, v{16+i}")
        a(f"v_dot2_f32_bf16 v62, v{16+i}, v{64+i}, v62")
        a(f"v_pk_add_f32 v[60:61], v[60:61], {R(32+2*i,2)}")
    a("v_add_f32 v60, v60, v61")
    rowsum16(a, 60); rowsum16(a, 62)
    a(f"v_mul_f32 v60, {hx(1/448)}, v60\nv_mov_b32 v14, 0\nv_mov_b32 v15, 0")
    for i in range(14):
        a(f"v_pk_add_f32 {R(32+2*i,2)}, {R(32+2*i,2)}, v[60:61] op_sel_hi:[1,0] neg_lo:[0,1] neg_hi:[0,1]")
        a(f"v_pk_fma_f32 v[14:15], {R(32+2*i,2)}, {R(32+2*i,2)}, v[14:15]")
    a("v_add_f32 v14, v14, v15")
    rowsum16(a, 14)
    a(f"""v_mov_b32 v15, {hx(1e-5)}
    v_fmac_f32 v15, {hx(1/448)}, v14
    v_rsq_f32 v60, v15
    v_mul_f32 v62, {hx(-math.log2(math.e))}, v62
    v_exp_f32 v62, v62
    v_mul_u32_u24 v9, 912, v6
    v_add_f32 v62, 1.0, v62
    v_rcp_f32 v62, v62
    v_add_u32 v9, v9, v7
    v_add_u32 v9, {WKL}, v9""")
    for i in range(14):
        a(f"v_pk_mul_f32 {R(32+2*i,2)}, {R(32+2*i,2)}, v[60:61] op_sel_hi:[1,0]")
        a(f"v_cvt_pk_bf16_f32 v{16+i}, v{32+2*i}, v{33+2*i}")
        if i & 1: a(f"ds_write_b64 v9, {R(15+i,2)} offset:{128*(i//2)}")
    a(f"""v_lshlrev_b32 v6, 2, v6
    s_lshl_b32 s47, s46, 6
    s_add_u32 s47, s47, {GG}
    s_mov_b32 exec_lo, 0x10001
    s_mov_b32 exec_hi, 0x10001
    buffer_store_dword v62, v6, s[36:39], s47 offen
    s_mov_b64 exec, -1""")
    a("K1_BAR:")
    a("""v_and_b32 v3, 31, v1
    v_mul_u32_u24 v10, 912, v3
    v_lshrrev_b32 v3, 5, v1
    v_lshl_add_u32 v10, v3, 4, v10
    v_cmp_lt_u32 vcc, 31, v1""")
    stamp(a, 1)
    a("s_waitcnt vmcnt(0) lgkmcnt(0)\ns_barrier")
    stamp(a, 2)
    a("s_cmp_ge_u32 s16, 4\ns_cbranch_scc1 K1_EXTRA")
    a(f"s_mul_i32 s44, s16, 56\ns_add_u32 s44, s44, {WQL}")
    w_addr(a, 224, 44)
    proj_loop(a, 224, False)
    a(f"s_mov_b32 s44, {hx(math.log2(math.e)/math.sqrt(28))}")
    for r in range(16): a(f"v_mul_f32 v{16+r}, s44, v{16+r}")
    pack_store(a, 0)
    a(f"""v_cndmask_b32 v38, v38, 0, vcc
    v_cndmask_b32 v39, v39, 0, vcc
    s_lshl_b32 s44, s17, 2
    s_add_u32 s44, s44, s18
    s_lshl_b32 s44, s44, 2
    s_add_u32 s44, s44, s16
    s_lshl_b32 s44, s44, 11
    s_branch K1_ST2""")
    a("K1_EXTRA:\ns_cmp_ge_u32 s18, 2\ns_cbranch_scc1 K1_HT\ns_cmp_lg_u32 s16, 4\ns_cbranch_scc1 K1_FIN")
    a(f"s_mov_b32 s44, {WKL}")
    w_addr(a, 56, 44)
    a("s_cmp_eq_u32 s18, 1\ns_cbranch_scc1 K1_V")
    proj_loop(a, 56, False)
    pack_store(a, 0)
    a(f"""v_mov_b32 v3, 0x3f803f80
    v_mov_b32 v4, 0x3f80
    v_cndmask_b32 v38, v38, v3, vcc
    v_cndmask_b32 v39, v39, v4, vcc
    s_lshl_b32 s44, s17, 12
    s_add_u32 s44, s44, {KV}
    s_branch K1_ST2""")
    a("K1_V:")
    proj_loop(a, 56, True)
    pack_store(a, 0)
    a("""v_and_b32 v4, 31, v1
    v_cmp_eq_u32 vcc, 28, v4
    v_mov_b32 v3, 0x3f803f80
    s_nop 0
    v_cndmask_b32 v3, 0, v3, vcc
    v_cmp_lt_u32 vcc, 27, v4
    s_nop 1""")
    for r in range(8): a(f"v_cndmask_b32 v{32+r}, v{32+r}, v3, vcc")
    a(f"s_lshl_b32 s44, s17, 12\ns_add_u32 s44, s44, {KV+2048}")
    a("""K1_ST2:
    buffer_store_dwordx4 v[32:35], v2, s[36:39], s44 offen
    buffer_store_dwordx4 v[36:39], v2, s[36:39], s44 offen offset:1024
    s_branch K1_FIN""")
    a(f"""K1_HT:
    v_lshrrev_b32 v3, 5, v1
    v_lshlrev_b32 v3, 2, v3
    v_bfe_u32 v4, v1, 2, 2
    v_add_u32 v3, v3, v4
    v_mul_u32_u24 v11, 912, v3
    v_bfe_u32 v4, v1, 4, 1
    v_lshl_add_u32 v11, v4, 5, v11
    v_and_b32 v4, 3, v1
    v_lshl_add_u32 v11, v4, 3, v11
    s_lshl_b32 s44, s2, 0
    s_sub_u32 s45, s16, 4
    s_lshl_b32 s44, s45, 6
    s_add_u32 s44, s44, {WKL}
    v_add_u32 v11, s44, v11
    s_lshl_b32 s46, s17, 1
    s_add_u32 s46, s46, s18
    s_sub_u32 s46, s46, 2
    s_lshl_b32 s46, s46, 11
    s_lshr_b32 s44, s45, 1
    s_lshl_b32 s44, s44, 18
    s_add_u32 s46, s46, s44
    s_and_b32 s44, s45, 1
    s_lshl_b32 s44, s44, 10
    s_add_u32 s46, s46, s44
    s_add_u32 s46, s46, {HT}""")
    for i in range(4):
        a(f"ds_read_b64_tr_b16 {R(32+4*i,2)}, v11 offset:{256*i}\nds_read_b64_tr_b16 {R(34+4*i,2)}, v11 offset:{256*i+8*912}")
    for i in range(4):
        if i == 3: a("s_cmp_ge_u32 s45, 2\ns_cbranch_scc1 K1_FIN")
        a(f"s_waitcnt lgkmcnt({6-2*i})\nbuffer_store_dwordx4 {R(32+4*i,4)}, v2, s[36:39], s46 offen\ns_add_u32 s46, s46, {2<<18}")
    a("K1_FIN:")
    stamp_out(a, 0, 3, 16, 36)
    a("K1_END:\ns_endpgm")
```

```python
from gen_common import *
import math
RD2 = 8
K2_ATT = 4*RD2*2048
K2_LDS = K2_ATT + 65536
Q, O, KVR, S, P = 16, 48, 112, 176, 208

def max16(a, dst, s, first):
    if first:
        a(f"v_max3_f32 v{dst}, v{s}, v{s+1}, v{s+2}")
        for r in range(3, 15, 2): a(f"v_max3_f32 v{dst}, v{dst}, v{s+r}, v{s+r+1}")
        a(f"v_max_f32 v{dst}, v{dst}, v{s+15}")
    else:
        for r in range(0, 16, 2): a(f"v_max3_f32 v{dst}, v{dst}, v{s+r}, v{s+r+1}")

def halfmax(a, v, t):
    a(f"v_mov_b32 v{t}, v{v}\ns_nop 1\nv_permlane32_swap_b32 v{v}, v{t}\nv_max_f32 v{v}, v{v}, v{t}")

def kv_load(a, slot):
    for i in range(4):
        a(f"buffer_load_dwordx4 {R(KVR+16*slot+4*i,4)}, v2, s[20:23], s41 offen offset:{1024*i}")
    a("s_add_u32 s41, s41, 4096")

def attention(a):
    a(f"""s_lshr_b32 s17, s2, 2
    s_and_b32 s18, s2, 3
    s_lshl_b32 s41, s16, 16
    s_add_u32 s41, s41, {KV}
    s_mov_b32 s40, {KV}
    v_and_b32 v3, 31, v1
    v_lshlrev_b32 v3, 2, v3
    s_lshl_b32 s42, s17, 7
    s_add_u32 s42, s42, {GG}
    v_cmp_lt_u32 s[46:47], 31, v1
    s_waitcnt lgkmcnt(0)""")
    srd(a, 36, 14, WS_END)
    a("s_mov_b32 s20, s14\ns_mov_b32 s21, s15\ns_add_u32 s22, s41, 65536\ns_mov_b32 s23, 0x20000")
    for i in range(2): a(f"buffer_load_dwordx4 {R(P+4*i,4)}, v2, s[36:39], s40 offen offset:{1024*i}")
    for j in range(4):
        a(f"s_xor_b32 s43, s16, {j}\ns_lshl_b32 s44, s2, 2\ns_add_u32 s43, s43, s44\ns_lshl_b32 s43, s43, 11")
        for i in range(2): a(f"buffer_load_dwordx4 {R(Q+8*j+4*i,4)}, v2, s[36:39], s43 offen offset:{1024*i}")
    a("buffer_load_dword v4, v3, s[36:39], s42 offen")
    for t in range(3): kv_load(a, t)
    red_addr(a, 8, 1, 16, K2_ATT, 16384, 43)
    for j in range(4):
        a(f"s_waitcnt vmcnt({13+2*(3-j)})")
        mfma(a, O+16*j, P, Q+8*j, None); mfma(a, O+16*j, P+4, Q+8*j+4, O+16*j)
    a("s_nop 6")
    for j in range(4):
        max16(a, 5, O+16*j, True); halfmax(a, 5, 6)
        a(f"v_cvt_pk_bf16_f32 v5, -v5, 0\nv_cndmask_b32 v{Q+8*j+6}, v{Q+8*j+6}, v5, s[46:47]")
    for r in range(64): a(f"v_mov_b32 v{O+r}, 0")
    stamp(a, 1)
    a("s_waitcnt vmcnt(8)")
    mfma(a, S, KVR, Q, None); mfma(a, S, KVR+4, Q+4, S)
    a("s_mov_b32 s45, 0\ns_cmp_lg_u32 s45, 0\ns_nop 7\ns_nop 1\nK2_ALOOP:")
    for u in range(16):
        t, j = u >> 2, u & 3
        sc, sn = S + 16*(u & 1), S + 16*((u + 1) & 1)
        pc, pp = P + 8*(u & 1), P + 8*((u + 1) & 1)
        tp, jp = ((u - 1) >> 2) & 3, (u - 1) & 3
        tn, jn = ((u + 1) >> 2) & 3, (u + 1) & 3
        def ex(q, r0=0, r1=4):
            for r in range(r0, r1): a(f"v_exp_f32 v{sc+4*q+r}, v{sc+4*q+r}")
        def cv(q):
            for r in range(2): a(f"v_cvt_pk_bf16_f32 v{pc+2*q+r}, v{sc+4*q+2*r}, v{sc+4*q+2*r+1}")
        if j == 3: a("s_waitcnt vmcnt(8)")
        mfma(a, sn, KVR+16*tn, Q+8*jn, None)
        ex(0)
        mfma(a, sn, KVR+16*tn+4, Q+8*jn+4, sn)
        ex(1); cv(0)
        if u == 0: a("s_cbranch_scc0 K2_AENT")
        mfma(a, O+16*jp, KVR+16*tp+12, pp+4, O+16*jp)
        if u == 0: a("K2_AENT:")
        if j == 0: kv_load(a, tp)
        ex(2); cv(1); ex(3, 0, 2)
        mfma(a, O+16*j, KVR+16*t+8, pc, O+16*j)
        ex(3, 2, 4); cv(2); cv(3)
        if u == 15: a("s_add_u32 s45, s45, 1\ns_cmp_lt_u32 s45, 4\ns_cbranch_scc1 K2_ALOOP")
    mfma(a, O+48, KVR+48+12, P+12, O+48)
    stamp(a, 2)
    a("s_nop 7\ns_nop 4")
    red_write(a, O, 8)
    a("s_waitcnt lgkmcnt(0)\ns_barrier")
    stamp(a, 3)
    red_read(a, O, 9)
    a(f"v_mov_b32 v6, v{O+12}\nv_mov_b32 v7, v{O+12}\nv_pk_mul_f32 v[12:13], {R(O,2)}, 0")
    for r in range(2, 16, 2): a(f"v_pk_fma_f32 v[12:13], {R(O+r,2)}, 0, v[12:13]")
    a(f"""v_permlane32_swap_b32 v6, v7
    v_cmp_nlt_f32 vcc, {hx(2.0**-30)}, v7
    v_cmp_ngt_f32 s[48:49], s50, v7
    v_cmp_u_f32 s[52:53], v12, v13
    s_or_b64 vcc, vcc, s[48:49]
    s_or_b64 vcc, vcc, s[52:53]
    s_cbranch_vccnz K2_SLOW
    K2_NORM:
    v_rcp_f32 v7, v7
    s_lshr_b32 s43, s17, 1
    s_lshl_b32 s43, s43, 16
    v_mul_f32 v6, v7, v4
    s_lshl_b32 s44, s18, 2
    s_add_u32 s44, s44, s16
    s_lshl_b32 s44, s44, 12
    s_add_u32 s43, s43, s44
    s_and_b32 s44, s17, 1
    s_lshl_b32 s44, s44, 10
    s_add_u32 s43, s43, s44
    s_add_u32 s43, s43, {OF}""")
    for r in range(0, 16, 2):
        a(f"v_pk_mul_f32 {R(O+r,2)}, {R(O+r,2)}, v[6:7] op_sel_hi:[1,0]")
        a(f"v_cvt_pk_bf16_f32 v{P+r//2}, v{O+r}, v{O+r+1}")
    a(f"""v_cndmask_b32 v{P+6}, v{P+6}, 0, s[46:47]
    v_cndmask_b32 v{P+7}, v{P+7}, 0, s[46:47]
    buffer_store_dwordx4 {R(P,4)}, v2, s[36:39], s43 offen
    buffer_store_dwordx4 {R(P+4,4)}, v2, s[36:39], s43 offen offset:2048
    s_branch K2_FIN""")
    a(f"K2_SLOW:\nv_cndmask_b32 v{Q+6}, v{Q+6}, 0, s[46:47]\nv_mov_b32 v5, 0xff800000\ns_mov_b32 s41, {KV}\ns_mov_b32 s22, {KV+64*4096}")
    a("K2_S1:")
    kv_load(a, 0); a("s_waitcnt vmcnt(0)")
    mfma(a, S, KVR, Q, None); mfma(a, S, KVR+4, Q+4, S)
    a("s_nop 7\ns_nop 5"); max16(a, 5, S, False)
    a("s_cmp_lt_u32 s41, s22\ns_cbranch_scc1 K2_S1")
    halfmax(a, 5, 6)
    a(f"""v_and_b32 v6, 0xffff0000, v5
    v_sub_f32 v5, v5, v6
    v_and_b32 v7, 0xffff0000, v5
    v_sub_f32 v5, v5, v7
    v_cvt_pk_bf16_f32 v6, -v6, -v7
    v_cvt_pk_bf16_f32 v5, -v5, 0
    v_cndmask_b32 v{Q+6}, v{Q+6}, v6, s[46:47]
    v_cndmask_b32 v{Q+7}, v{Q+7}, v5, s[46:47]
    s_mov_b32 s41, {KV}""")
    for r in range(16): a(f"v_mov_b32 v{O+r}, 0")
    a("K2_S2:")
    kv_load(a, 0); a("s_waitcnt vmcnt(0)")
    mfma(a, S, KVR, Q, None); mfma(a, S, KVR+4, Q+4, S)
    a("s_nop 7\ns_nop 5")
    for r in range(16): a(f"v_exp_f32 v{S+r}, v{S+r}")
    for r in range(8): a(f"v_cvt_pk_bf16_f32 v{P+r}, v{S+2*r}, v{S+2*r+1}")
    a("s_nop 1")
    mfma(a, O, KVR+8, P, O); mfma(a, O, KVR+12, P+4, O)
    a(f"""s_cmp_lt_u32 s41, s22
    s_cbranch_scc1 K2_S2
    s_nop 7
    s_nop 5
    v_mov_b32 v6, v{O+12}
    v_mov_b32 v7, v{O+12}
    s_nop 1
    v_permlane32_swap_b32 v6, v7
    s_nop 1
    s_branch K2_NORM""")

def gemm1(a):
    ACC, TR, DIR = 32, 96, 112
    a(f"""s_and_b32 s17, s2, 7
    s_mul_i32 s18, s17, 49
    s_add_u32 s19, s18, 50
    s_add_u32 s18, s18, 1
    s_lshr_b32 s18, s18, 1
    s_lshr_b32 s19, s19, 1
    s_lshr_b32 s17, s2, 3
    s_add_u32 s17, s17, s18
    s_cmp_ge_u32 s17, s19
    s_cbranch_scc1 K2_END
    s_sub_u32 s16, s16, 4
    s_mul_i32 s18, s17, 9363
    s_lshr_b32 s18, s18, 16
    s_mul_i32 s19, s18, 7
    s_sub_u32 s19, s17, s19
    s_lshr_b32 s42, s16, 1
    s_and_b32 s43, s16, 1
    s_mul_i32 s44, s16, {RD2*2048}
    s_mul_i32 s40, s16, {512*3584}
    s_lshl_b32 s45, s18, 7
    s_add_u32 s40, s40, s45
    s_lshl_b32 s41, s19, 18
    s_lshl_b32 s46, s16, 16
    s_add_u32 s41, s41, s46
    s_add_u32 s41, s41, {HT}
    s_lshl_b32 s46, s43, 10
    v_add_u32 v6, s46, v2
    v_xor_b32 v7, 1024, v6""")
    dma_voff(a, 4, 1, 3, 3584, 47)
    tr_addr(a, 12, 1, 3, 44, 42)
    a("""v_lshrrev_b32 v3, 5, v1
    v_lshlrev_b32 v3, 3, v3
    s_lshl_b32 s46, s42, 6
    s_add_u32 s46, s46, s45
    s_waitcnt lgkmcnt(0)""")
    srd(a, 20, 4, 2048*3584); srd(a, 24, 6, 3584); srd(a, 36, 14, WS_END)
    for g in range(4): a(f"buffer_load_dwordx2 {R(16+2*g,2)}, v3, s[24:27], s46 offen offset:{16*g}")
    red_addr(a, 8, 1, 16, 0, RD2*2048, 47)
    st = dict(dma=(20, 4, 40, 16*3584), dir=(36, 6, 41, 2048), tra=12, a_is_tr=True)
    gemm_steps(a, [st]*32, RD2, ACC, TR, DIR, 44)
    stamp(a, 1); stamp(a, 2)
    a("s_nop 7\ns_nop 4")
    red_write(a, ACC, 8)
    a("s_waitcnt lgkmcnt(0)\ns_barrier")
    stamp(a, 3)
    red_read(a, ACC, 9)
    c = 2*math.sqrt(2/math.pi)*math.log2(math.e)
    a(f"""s_mov_b32 s46, {hx(-c*0.044715)}
    v_mov_b32 v24, {hx(-c)}
    s_mul_i32 s41, s19, {112*2048}
    s_lshl_b32 s45, s18, 1
    s_add_u32 s45, s45, s42
    s_lshl_b32 s45, s45, 12
    s_add_u32 s41, s41, s45
    s_add_u32 s41, s41, {UU}""")
    T = 48
    for r in range(16):
        if r & 1: a(f"v_and_b32 v{T+r}, 0xffff0000, v{16+r//2}")
        else: a(f"v_lshlrev_b32 v{T+r}, 16, v{16+r//2}")
    for r in range(0, 16, 2): a(f"v_pk_add_f32 {R(ACC+r,2)}, {R(ACC+r,2)}, {R(T+r,2)}")
    for r in range(0, 16, 2): a(f"v_pk_mul_f32 {R(T+r,2)}, {R(ACC+r,2)}, {R(ACC+r,2)}")
    for r in range(16): a(f"v_fma_f32 v{T+r}, v{T+r}, s46, v24")
    for r in range(0, 16, 2): a(f"v_pk_mul_f32 {R(T+r,2)}, {R(T+r,2)}, {R(ACC+r,2)}")
    for r in range(16): a(f"v_exp_f32 v{T+r}, v{T+r}")
    for r in range(16): a(f"v_add_f32 v{T+r}, 1.0, v{T+r}")
    for r in range(16): a(f"v_rcp_f32 v{T+r}, v{T+r}")
    for r in range(0, 16, 2): a(f"v_pk_mul_f32 {R(T+r,2)}, {R(T+r,2)}, {R(ACC+r,2)}")
    for r in range(8): a(f"v_cvt_pk_bf16_f32 v{16+r}, v{T+2*r}, v{T+2*r+1}")
    a("buffer_store_dwordx4 v[16:19], v6, s[36:39], s41 offen\nbuffer_store_dwordx4 v[20:23], v6, s[36:39], s41 offen offset:2048")
    a("s_add_u32 s16, s16, 4")

def k2(a):
    head(a, "k2_kernel")
    a("s_cmp_ge_u32 s2, 256\ns_cbranch_scc1 K2_END")
    stamp(a, 0)
    a(f"""s_load_dwordx2 s[14:15], s[0:1], 104
    s_load_dwordx4 s[4:7], s[0:1], 48
    v_lshrrev_b32 v2, 6, v0
    v_and_b32 v1, 63, v0
    s_mov_b32 s50, {hx(2.0**60)}
    v_readfirstlane_b32 s16, v2
    s_mov_b32 s51, 0x7f800000
    v_lshlrev_b32 v2, 4, v1
    s_cmp_ge_u32 s16, 4
    s_cbranch_scc1 K2_GEMM""")
    attention(a)
    a("K2_GEMM:")
    gemm1(a)
    a("K2_FIN:")
    stamp_out(a, 1, 4, 16, 36)
    a("K2_END:\ns_endpgm")
```

```python
from gen_common import *
RD3 = 12
K3_LDS = 4*RD3*2048
def k3(a):
    ACC, TR, DIR = 32, 96, 112
    head(a, "k3_kernel")
    a("s_cmp_ge_u32 s2, 224\ns_cbranch_scc1 K3_END")
    stamp(a, 0)
    a(f"""s_load_dwordx2 s[14:15], s[0:1], 104
    s_load_dwordx4 s[4:7], s[0:1], 64
    s_load_dwordx2 s[8:9], s[0:1], 32
    s_load_dwordx2 s[10:11], s[0:1], 88
    v_lshrrev_b32 v2, 6, v0
    v_and_b32 v1, 63, v0
    s_lshr_b32 s17, s2, 3
    v_readfirstlane_b32 s16, v2
    s_mul_i32 s18, s17, 9363
    s_lshr_b32 s18, s18, 16
    s_mul_i32 s19, s18, 7
    s_sub_u32 s19, s17, s19
    s_and_b32 s17, s2, 7
    s_lshl_b32 s17, s17, 2
    s_add_u32 s18, s18, s17
    v_lshlrev_b32 v2, 4, v1
    s_lshr_b32 s42, s16, 1
    s_and_b32 s43, s16, 1
    s_mul_i32 s44, s16, {RD3*2048}
    s_mul_i32 s40, s16, {448*4096}
    s_lshl_b32 s45, s18, 7
    s_add_u32 s40, s40, s45
    s_mul_i32 s41, s19, {112*2048}
    s_mul_i32 s46, s16, {28*2048}
    s_add_u32 s41, s41, s46
    s_add_u32 s41, s41, {UU}
    s_mul_i32 s48, s16, {112*896}
    s_lshl_b32 s46, s19, 7
    s_add_u32 s48, s48, s46
    s_lshl_b32 s49, s18, 16
    s_lshl_b32 s46, s16, 14
    s_add_u32 s49, s49, s46
    s_add_u32 s49, s49, {OF}
    s_lshl_b32 s46, s42, 10
    v_add_u32 v6, s46, v2
    v_xor_b32 v7, 1024, v6
    s_lshl_b32 s46, s43, 10
    v_add_u32 v18, s46, v2
    v_xor_b32 v19, 1024, v18""")
    dma_voff(a, 4, 1, 3, 4096, 47)
    a(f"""v_and_b32 v3, 31, v1
    s_lshl_b32 s46, s43, 5
    v_add_u32 v24, s46, v3
    v_lshlrev_b32 v20, 2, v24
    v_xor_b32 v21, 128, v20
    v_lshlrev_b32 v22, 1, v24
    s_lshl_b32 s46, s18, 8
    s_add_u32 s46, s46, {GG}
    s_waitcnt lgkmcnt(0)""")
    srd(a, 20, 4, 1792*4096); srd(a, 36, 14, WS_END); srd(a, 24, 6, 4096); srd(a, 28, 8, 448*896); srd(a, 32, 10, 2048*896)
    a("""buffer_load_dword v20, v20, s[36:39], s46 offen
    buffer_load_dword v21, v21, s[36:39], s46 offen
    buffer_load_ushort v22, v22, s[24:27], s45 offen""")
    tr_addr(a, 12, 1, 3, 44, 43)
    tr_addr(a, 14, 1, 3, 44, 42)
    dma_voff(a, 16, 1, 3, 896, 47)
    red_addr(a, 8, 1, 16, 0, RD3*2048, 47)
    def scale():
        a("v_sub_f32 v20, 1.0, v20\nv_sub_f32 v26, 1.0, v21\ns_nop 7\ns_nop 1")
        for j in range(4):
            for r in range(0, 16, 2):
                a(f"v_pk_mul_f32 {R(ACC+16*j+r,2)}, {R(ACC+16*j+r,2)}, {R(26 if j & 1 else 20,2)} op_sel_hi:[1,0]")
        a("s_nop 1")
    steps = [dict(dma=(20, 4, 40, 16*4096), dir=(36, 6, 41, 2048), tra=12, a_is_tr=False) for _ in range(28)]
    steps += [dict(dma=(28, 16, 48, (12 if i & 1 else 16)*896), dir=(36, 18, 49, 2048), tra=14, a_is_tr=True) for i in range(8)]
    steps[28]['before'] = scale
    gemm_steps(a, steps, RD3, ACC, TR, DIR, 44)
    stamp(a, 1)
    a("s_nop 7\ns_nop 4")
    red_write(a, ACC, 8)
    a(f"""v_lshlrev_b32 v22, 16, v22
    v_mul_f32 v22, v22, v20
    v_mul_u32_u24 v24, 896, v24
    v_lshrrev_b32 v3, 5, v1
    v_lshl_add_u32 v24, v3, 4, v24
    s_mul_i32 s46, s18, {64*896}
    s_lshl_b32 s47, s19, 7
    s_add_u32 s46, s46, s47
    s_lshl_b32 s47, s42, 6
    s_add_u32 s46, s46, s47
    s_waitcnt lgkmcnt(0)
    s_barrier""")
    stamp(a, 2)
    red_read(a, ACC, 9)
    for r in range(0, 16, 2):
        a(f"v_pk_add_f32 {R(ACC+r,2)}, {R(ACC+r,2)}, v[22:23] op_sel_hi:[1,0]")
    for r in range(8): a(f"v_cvt_pk_bf16_f32 v{48+r}, v{ACC+2*r}, v{ACC+2*r+1}")
    a("s_nop 1")
    for p in range(2):
        a(f"v_permlane32_swap_b32 v{48+4*p}, v{50+4*p}\nv_permlane32_swap_b32 v{49+4*p}, v{51+4*p}")
    for p in range(2):
        a(f"buffer_store_dwordx4 {R(48+4*p,4)}, v24, s[32:35], s46 offen offset:{32*p}")
    stamp_out(a, 2, 3, 16, 36)
    a("K3_END:\ns_endpgm")
```

```python
import sys, gen_common
gen_common.DIAG = "--diag" in sys.argv
from gen_common import *
import gen_k1, gen_k2, gen_k3
ref = open('cdna_kernels/%s.s.ref' % NAME).read().split("\n")
hdr = [l for l in ref if l.startswith(";") and "@launch" not in l and "Override" not in l and "grid=ceil" not in l]
a = Asm()
gen_k1.k1(a); gen_k2.k2(a); gen_k3.k3(a)
out = "\n".join(hdr) + "\n"
out += f"; @launch kernel=k1_kernel grid=(256,1,1) block=(512,1,1) lds={gen_k1.K1_LDS}\n"
out += f"; @launch kernel=k2_kernel grid=(256,1,1) block=(512,1,1) lds={gen_k2.K2_LDS}\n"
out += f"; @launch kernel=k3_kernel grid=(224,1,1) block=(256,1,1) lds={gen_k3.K3_LDS}\n"
out += '.amdgcn_target "amdgcn-amd-amdhsa--gfx950"\n.text\n' + a.text()
out += '.section .rodata,"a"\n.p2align 6\n' + desc("k1_kernel", 80) + desc("k2_kernel", 224) + desc("k3_kernel", 208)
open(sys.argv[1], 'w').write(out)
```

```python
import struct
NAME = "gated_mix__grouped_kv_mqa__mixer_token_mlp__prompt"
QF, KV, HT, GG, UU, OF, WS_END = 0, 0x200000, 0x240000, 0x400000, 0x410000, 0x600000, 0x800000
CU, CO = 0x5A0000, 0x5A8000
ST = 0x900000

def f2u(x): return struct.unpack('<I', struct.pack('<f', x))[0]
def hx(x): return "0x%x" % f2u(x)

class Asm:
    def __init__(s): s.l = []
    def __call__(s, t):
        for x in t.strip().split("\n"):
            x = x.strip()
            if x: s.l.append(x if x.endswith(":") else "    " + x)
    def text(s): return "\n".join(s.l) + "\n"

def R(b, n): return "v[%d:%d]" % (b, b + n - 1)
def srd(a, d, b, nbytes):
    a(f"s_mov_b32 s{d}, s{b}\ns_mov_b32 s{d+1}, s{b+1}\ns_mov_b32 s{d+2}, {nbytes}\ns_mov_b32 s{d+3}, 0x20000")
def S4(d): return "s[%d:%d]" % (d, d + 3)
def mfma(a, d, x, y, c):
    a(f"v_mfma_f32_32x32x16_bf16 {R(d,16)}, {R(x,4)}, {R(y,4)}, {'0' if c is None else R(c,16)}")
def head(a, name):
    a(f".globl {name}\n.p2align 8\n.type {name},@function\n{name}:")
def desc(name, vgpr):
    return (f".amdhsa_kernel {name}\n  .amdhsa_next_free_vgpr {vgpr}\n  .amdhsa_next_free_sgpr 96\n"
            f"  .amdhsa_accum_offset {min(256,(vgpr+3)//4*4)}\n  .amdhsa_group_segment_fixed_size 0\n"
            "  .amdhsa_kernarg_size 112\n  .amdhsa_user_sgpr_count 2\n"
            "  .amdhsa_user_sgpr_kernarg_segment_ptr 1\n  .amdhsa_system_sgpr_workgroup_id_x 1\n"
            ".end_amdhsa_kernel\n")

import sys
OPT = dict(x.split('=') for x in sys.argv if '=' in x)
def opt(k, d=0): return int(OPT.get(k, d))
DIAG = False
def stamp(a, k):
    if DIAG: a(f"s_memrealtime s[{60+2*k}:{61+2*k}]")
def stamp_out(a, kern, n, wavereg, ws):
    if not DIAG: return
    a(f"s_memrealtime s[{60+2*n}:{61+2*n}]\ns_waitcnt lgkmcnt(0)")
    a(f"s_lshl_b32 s90, s2, 3\ns_add_u32 s90, s90, s{wavereg}\ns_lshl_b32 s90, s90, 5")
    a(f"s_add_u32 s90, s90, {ST + kern*0x20000}\ns_mov_b32 s{ws+2}, 0x1000000\ns_mov_b64 exec, 1\nv_mov_b32 v1, 0")
    for k in range(n + 1):
        a(f"v_mov_b32 v0, s{60+2*k}\nbuffer_store_dword v0, v1, {S4(ws)}, s90 offen offset:{4*k}")

def tr_addr(a, dst, lane, tmp, base_s, sel_s):
    a(f"""v_lshrrev_b32 v{tmp}, 5, v{lane}
    v_lshlrev_b32 v{dst}, 9, v{tmp}
    v_bfe_u32 v{tmp}, v{lane}, 2, 2
    v_lshl_add_u32 v{dst}, v{tmp}, 7, v{dst}
    v_lshrrev_b32 v{tmp}, 1, v{tmp}
    v_xor_b32 v{tmp}, s{sel_s}, v{tmp}
    v_lshl_add_u32 v{dst}, v{tmp}, 6, v{dst}
    v_bfe_u32 v{tmp}, v{lane}, 4, 1
    v_lshl_add_u32 v{dst}, v{tmp}, 5, v{dst}
    v_and_b32 v{tmp}, 3, v{lane}
    v_lshl_add_u32 v{dst}, v{tmp}, 3, v{dst}
    v_add_u32 v{dst}, s{base_s}, v{dst}
    v_xor_b32 v{dst+1}, 64, v{dst}""")

def dma_voff(a, dst, lane, tmp, stride, sreg):
    a(f"""v_lshrrev_b32 v{tmp}, 3, v{lane}
    s_mov_b32 s{sreg}, {stride}
    v_mul_lo_u32 v{dst}, v{tmp}, s{sreg}
    v_lshlrev_b32 v{tmp}, 1, v{tmp}
    v_and_b32 v{tmp}, 4, v{tmp}
    v_xor_b32 v{tmp}, v{tmp}, v{lane}
    v_and_b32 v{tmp}, 7, v{tmp}
    v_lshl_add_u32 v{dst}, v{tmp}, 4, v{dst}
    v_add_u32 v{dst+1}, {8*stride-1024}, v{dst}""")

def gemm_steps(a, steps, RD, ACC, TR, DIR, ring_s, pre=None, fill=None):
    n = len(steps); ops = []; done = [0]; pend = []
    def need(tag):
        k = max(i for i, t in enumerate(ops) if t == tag) + 1
        if k > done[0]:
            a(f"s_waitcnt vmcnt({len(ops)-k})"); done[0] = k
    def ld_dir(i, b):
        d2, v2, s2, inc2 = steps[i]['dir']
        a(f"buffer_load_dwordx4 {R(DIR+8*(i%RD)+4*b,4)}, v{v2+b}, {S4(d2)}, s{s2} offen {steps[i].get('dflag','')}")
        ops.append(('dir', i))
        if b: a(f"s_add_u32 s{s2}, s{s2}, {inc2}")
    def issue(i):
        st = steps[i]; sd, vo, so, inc = st['dma']; df = st.get('defer')
        a(f"s_add_u32 m0, s{ring_s}, {(i%RD)*2048}")
        if df: pend.append(i); a("s_nop 0")
        else: ld_dir(i, 0)
        a(f"buffer_load_dwordx4 v{vo}, {S4(sd)}, s{so} offen lds"); ops.append(('dma', i))
        if not df: ld_dir(i, 1)
        a(f"buffer_load_dwordx4 v{vo+1}, {S4(sd)}, s{so} offen offset:1024 lds"); ops.append(('dma', i))
        a(f"s_add_u32 s{so}, s{so}, {inc}")
    def trread(i):
        need(('dma', i))
        sl = i % RD; t = TR + 8*(i & 1); ad = steps[i]['tra']
        for blk in range(2):
            for hf in range(2):
                a(f"ds_read_b64_tr_b16 {R(t+4*blk+2*hf,2)}, v{ad+blk} offset:{sl*2048+hf*1024}")
    def gate(i):
        if 'gate' in steps[i]:
            steps[i]['gate'](); done[0] = len(ops)
            for k in pend: ld_dir(k, 0); ld_dir(k, 1)
            del pend[:]
    if fill is not None:
        for i in range(fill, fill + RD): issue(i)
        return
    for i in range(min(RD, n)): issue(i)
    issued = min(RD, n)
    if pre: pre()
    for i in range(n):
        st = steps[i]; sl = i % RD
        first = i == 0 or st.get('first')
        nxt = i + 1 < n and not steps[i+1].get('first')
        if 'before' in st: st['before']()
        gate(i)
        if first: trread(i)
        if nxt: trread(i + 1)
        need(('dir', i))
        a(f"s_waitcnt lgkmcnt({4 if nxt else 0})")
        t = TR + 8*(i & 1); d = DIR + 8*sl
        A_, B_ = (t, d) if st['a_is_tr'] else (d, t)
        for j in range(4):
            mfma(a, ACC+16*j, A_+4*(j >> 1), B_+4*(j & 1), None if first else ACC+16*j)
        if issued < n:
            issue(issued); issued += 1

LBL = [0]
def poll(a, ws, off_s, nflag, stride, lane, va, vt, nap=2):
    LBL[0] += 1; L = f"PL{LBL[0]}"
    a(f"""v_min_u32 v{vt}, {nflag-1}, v{lane}
    v_lshrrev_b32 v{va}, 2, v{vt}
    v_mul_u32_u24 v{va}, {stride}, v{va}
    v_and_b32 v{vt}, 3, v{vt}
    v_lshl_add_u32 v{va}, v{vt}, 2, v{va}
    s_mov_b32 s55, 0x40000
    {L}:
    buffer_load_dword v{vt}, v{va}, {S4(ws)}, s{off_s} offen sc1
    s_waitcnt vmcnt(0)
    v_cmp_eq_u32 vcc, 0, v{vt}
    s_cbranch_vccz {L}D
    s_sleep {nap}
    s_sub_u32 s55, s55, 1
    s_cbranch_scc0 {L}
    {L}D:""")
def signal(a, ws, off_s, vz, vt):
    a(f"""v_mov_b32 v{vt}, 1
    s_waitcnt vmcnt(0)
    s_mov_b64 exec, 1
    buffer_store_dword v{vt}, v{vz}, {S4(ws)}, s{off_s} offen sc1
    s_mov_b64 exec, -1""")
def lds_arrive(a, va, off, vt):
    a(f"v_mov_b32 v{vt}, 1\ns_waitcnt lgkmcnt(0)\ns_mov_b64 exec, 1\nds_add_u32 v{va}, v{vt} offset:{off}\ns_mov_b64 exec, -1")
def lds_wait(a, va, off, vt, target=4):
    LBL[0] += 1; L = f"LW{LBL[0]}"
    a(f"""{L}:
    ds_read_b32 v{vt}, v{va} offset:{off}
    s_waitcnt lgkmcnt(0)
    v_readfirstlane_b32 s54, v{vt}
    s_cmp_lt_u32 s54, {target}
    s_cbranch_scc1 {L}""")

def red_write(a, ACC, vaddr):
    for j in range(1, 4):
        for g in range(4):
            a(f"ds_write_b128 v{vaddr}, {R(ACC+16*j+4*g,4)} offset:{j*4096+g*1024}")
def red_read(a, ACC, vaddr3):
    for j in range(1, 4):
        for g in range(4):
            a(f"ds_read_b128 {R(ACC+16*j+4*g,4)}, v{vaddr3+j-1} offset:{j*4096+g*1024}")
    for j in range(1, 4):
        a(f"s_waitcnt lgkmcnt({4*(3-j)})")
        for r in range(0, 16, 2):
            a(f"v_pk_add_f32 {R(ACC+r,2)}, {R(ACC+r,2)}, {R(ACC+16*j+r,2)}")
def red_addr(a, dst, lane, w_s, base, stride, tmp_s):
    for j in range(4):
        a(f"s_xor_b32 s{tmp_s}, s{w_s}, {j}\ns_mul_i32 s{tmp_s}, s{tmp_s}, {stride}\ns_add_u32 s{tmp_s}, s{tmp_s}, {base}")
        a(f"v_lshl_add_u32 v{dst+j}, v{lane}, 4, s{tmp_s}")
```

```python
from gen_common import *
import math
XL, WQL, WKL, K1_LDS = 0, 29184, 129536, 155648

def proj_loop(a, stride, swap):
    D = 4
    def rd(ks):
        b = 32 + 8*(ks % D); base = 11 + ks // 14; o = (ks % 14)*16*stride
        a(f"ds_read_b128 {R(b,4)}, v10 offset:{32*ks}")
        a(f"ds_read_b64_tr_b16 {R(b+4,2)}, v{base} offset:{o}")
        a(f"ds_read_b64_tr_b16 {R(b+6,2)}, v{base} offset:{o+4*stride}")
    for ks in range(D - 1): rd(ks)
    for ks in range(28):
        if ks + D - 1 < 28: rd(ks + D - 1)
        a(f"s_waitcnt lgkmcnt({3*min(D-1, 27-ks)})")
        b = 32 + 8*(ks % D)
        x, y = (b, b+4) if swap else (b+4, b)
        mfma(a, 16, x, y, None if ks == 0 else 16)
    a("s_nop 7\ns_nop 4")

def w_addr(a, stride, base_expr_s):
    a(f"""v_lshrrev_b32 v3, 5, v1
    v_lshlrev_b32 v3, 3, v3
    v_bfe_u32 v4, v1, 2, 2
    v_add_u32 v3, v3, v4
    v_mul_u32_u24 v11, {stride}, v3
    v_bfe_u32 v4, v1, 4, 1
    v_lshl_add_u32 v11, v4, 5, v11
    v_and_b32 v4, 3, v1
    v_lshl_add_u32 v11, v4, 3, v11
    v_add_u32 v11, s{base_expr_s}, v11
    v_add_u32 v12, {14*16*stride}, v11""")

def pack_store(a, soff):
    for r in range(8): a(f"v_cvt_pk_bf16_f32 v{32+r}, v{16+2*r}, v{17+2*r}")

def rowsum16(a, v):
    for sh in (8, 4, 2, 1):
        a(f"s_nop 1\nv_add_f32_dpp v{v}, v{v}, v{v} row_ror:{sh} row_mask:0xf bank_mask:0xf")

def k1(a):
    head(a, "k1_kernel")
    a("s_cmp_ge_u32 s2, 256\ns_cbranch_scc1 K1_END")
    stamp(a, 0)
    a("""s_load_dwordx4 s[4:7], s[0:1], 0
    s_load_dwordx4 s[8:11], s[0:1], 16
    s_load_dwordx2 s[12:13], s[0:1], 80
    s_load_dwordx2 s[14:15], s[0:1], 104
    s_load_dwordx2 s[48:49], s[0:1], 48
    v_lshrrev_b32 v2, 6, v0
    v_and_b32 v1, 63, v0
    s_and_b32 s17, s2, 7
    v_readfirstlane_b32 s16, v2
    s_lshl_b32 s17, s17, 3
    s_lshr_b32 s18, s2, 5
    s_add_u32 s17, s17, s18
    s_bfe_u32 s18, s2, 0x20003
    v_lshlrev_b32 v2, 4, v1
    s_lshl_b32 s40, s17, 5
    s_lshl_b32 s41, s16, 2
    s_add_u32 s40, s40, s41
    s_mul_i32 s40, s40, 896
    s_mul_i32 s41, s41, 912
    v_mul_u32_u24 v3, 4682, v0
    v_lshrrev_b32 v3, 16, v3
    v_mul_u32_u24 v4, 14, v3
    v_sub_u32 v4, v0, v4
    v_mul_u32_u24 v5, 896, v3
    v_lshl_add_u32 v5, v4, 4, v5
    s_mul_i32 s42, s18, 224
    s_lshl_b32 s43, s16, 10
    s_waitcnt lgkmcnt(0)""")
    srd(a, 20, 4, 2048*896); srd(a, 24, 6, 448*896); srd(a, 36, 14, WS_END)
    a(f"""s_cmp_lg_u32 s16, 7
    s_cbranch_scc1 K1_NZ
    s_lshl_b32 s44, s2, 7
    s_add_u32 s44, s44, {CU}
    v_mov_b32 v6, 0
    v_lshlrev_b32 v7, 2, v1
    s_mov_b64 exec, 15
    buffer_store_dword v6, v7, s[36:39], s44 offen
    s_add_u32 s44, s44, {CO-CU}
    buffer_store_dword v6, v7, s[36:39], s44 offen
    K1_NZ:
    s_mov_b32 exec_lo, -1
    s_mov_b32 exec_hi, 0xffffff""")
    for r in range(4):
        a(f"s_add_u32 m0, s41, {XL+r*912}\ns_add_u32 s44, s40, {r*896}\nbuffer_load_dwordx4 v2, s[20:23], s44 offen lds")
    a("s_mov_b32 exec_hi, -1")
    a("s_cmp_lt_u32 s16, 4\ns_cbranch_scc1 K1_WQ\ns_cmp_lt_u32 s18, 2\ns_cbranch_scc1 K1_NOLN0")
    srd(a, 32, 12, 896)
    a("""s_sub_u32 s45, s16, 4
    s_lshl_b32 s45, s45, 2
    v_lshrrev_b32 v6, 4, v1
    v_add_u32 v6, s45, v6
    v_and_b32 v7, 15, v1
    v_lshlrev_b32 v7, 3, v7
    v_mul_u32_u24 v8, 896, v6
    v_add_u32 v8, v8, v7
    s_lshl_b32 s46, s17, 1
    s_add_u32 s46, s46, s18
    s_sub_u32 s46, s46, 2
    s_mul_i32 s47, s46, 14336""")
    for i in range(7): a(f"buffer_load_dwordx2 {R(16+2*i,2)}, v8, s[20:23], s47 offen offset:{128*i}")
    for i in range(7): a(f"buffer_load_dwordx2 {R(64+2*i,2)}, v7, s[32:35], 0 offen offset:{128*i}")
    a("K1_NOLN0:\ns_cmp_eq_u32 s16, 7\ns_cbranch_scc1 K1_W7")
    a("K1_WQ:")
    for i in range(14):
        a(f"s_add_u32 m0, s43, {WQL+i*7168}\ns_add_u32 s44, s42, {i*28672}\nbuffer_load_dwordx4 v5, s[24:27], s44 offen lds")
    a("s_cmp_lt_u32 s16, 4\ns_cbranch_scc1 K1_BAR\ns_cmp_lt_u32 s18, 2\ns_cbranch_scc1 K1_BAR\ns_waitcnt vmcnt(14)\ns_branch K1_LN")
    a("K1_W7:\ns_cmp_ge_u32 s18, 2\ns_cbranch_scc1 K1_LN0")
    a("s_cmp_eq_u32 s18, 0\ns_cselect_b32 s28, s8, s10\ns_cselect_b32 s29, s9, s11\ns_mov_b32 s30, 25088\ns_mov_b32 s31, 0x20000")
    for i in range(25):
        if i % 4 == 0: a(f"s_mov_b32 m0, {WKL+i*1024}\ns_mov_b32 s44, {i*1024}")
        a(f"buffer_load_dwordx4 v2, s[28:31], s44 offen offset:{(i%4)*1024} lds")
    a("s_branch K1_BAR")
    a("K1_LN0:\ns_waitcnt vmcnt(0)")
    a("K1_LN:")
    a("v_mov_b32 v62, 0\nv_mov_b32 v60, 0\nv_mov_b32 v61, 0")
    for i in range(14):
        a(f"v_lshlrev_b32 v{32+2*i}, 16, v{16+i}\nv_and_b32 v{33+2*i}, 0xffff0000, v{16+i}")
        a(f"v_dot2_f32_bf16 v62, v{16+i}, v{64+i}, v62")
        a(f"v_pk_add_f32 v[60:61], v[60:61], {R(32+2*i,2)}")
    a("v_add_f32 v60, v60, v61")
    rowsum16(a, 60); rowsum16(a, 62)
    a(f"v_mul_f32 v60, {hx(1/448)}, v60\nv_mov_b32 v14, 0\nv_mov_b32 v15, 0")
    for i in range(14):
        a(f"v_pk_add_f32 {R(32+2*i,2)}, {R(32+2*i,2)}, v[60:61] op_sel_hi:[1,0] neg_lo:[0,1] neg_hi:[0,1]")
        a(f"v_pk_fma_f32 v[14:15], {R(32+2*i,2)}, {R(32+2*i,2)}, v[14:15]")
    a("v_add_f32 v14, v14, v15")
    rowsum16(a, 14)
    a(f"""v_mov_b32 v15, {hx(1e-5)}
    v_fmac_f32 v15, {hx(1/448)}, v14
    v_rsq_f32 v60, v15
    v_mul_f32 v62, {hx(-math.log2(math.e))}, v62
    v_exp_f32 v62, v62
    v_mul_u32_u24 v9, 912, v6
    v_add_f32 v62, 1.0, v62
    v_rcp_f32 v62, v62
    v_add_u32 v9, v9, v7
    v_add_u32 v9, {WKL}, v9""")
    for i in range(14):
        a(f"v_pk_mul_f32 {R(32+2*i,2)}, {R(32+2*i,2)}, v[60:61] op_sel_hi:[1,0]")
        a(f"v_cvt_pk_bf16_f32 v{16+i}, v{32+2*i}, v{33+2*i}")
        if i & 1: a(f"ds_write_b64 v9, {R(15+i,2)} offset:{128*(i//2)}")
    a(f"""v_lshlrev_b32 v6, 2, v6
    s_lshl_b32 s47, s46, 6
    s_add_u32 s47, s47, {GG}
    s_mov_b32 exec_lo, 0x10001
    s_mov_b32 exec_hi, 0x10001
    buffer_store_dword v62, v6, s[36:39], s47 offen
    s_mov_b64 exec, -1""")
    a("K1_BAR:")
    a("""v_and_b32 v3, 31, v1
    v_mul_u32_u24 v10, 912, v3
    v_lshrrev_b32 v3, 5, v1
    v_lshl_add_u32 v10, v3, 4, v10
    v_cmp_lt_u32 vcc, 31, v1""")
    def pf():
        a(f"""s_mov_b32 s50, {2048*3584}
        s_mov_b32 s51, 0x20000
        s_add_u32 s52, s2, {opt('xs')}
        s_and_b32 s52, s52, 7
        s_mul_i32 s52, s52, 7
        s_lshr_b32 s52, s52, 1
        s_lshl_b32 s52, s52, 7
        s_lshr_b32 s53, s2, 3
        s_mul_i32 s53, s53, {64*3584}
        s_add_u32 s52, s52, s53
        v_lshrrev_b32 v13, 3, v0
        v_mul_u32_u24 v13, 3584, v13
        v_and_b32 v14, 7, v0
        v_lshl_add_u32 v13, v14, 6, v13
        buffer_load_dword v13, v13, s[48:51], s52 offen""")
    stamp(a, 1)
    if opt('pf1') == 1: pf()
    a(f"s_waitcnt vmcnt({1 if opt('pf1') == 1 else 0}) lgkmcnt(0)\ns_barrier")
    if opt('pf1') == 2: pf()
    stamp(a, 2)
    a("s_cmp_ge_u32 s16, 4\ns_cbranch_scc1 K1_EXTRA")
    a(f"s_mul_i32 s44, s16, 56\ns_add_u32 s44, s44, {WQL}")
    w_addr(a, 224, 44)
    proj_loop(a, 224, False)
    a(f"s_mov_b32 s44, {hx(math.log2(math.e)/math.sqrt(28))}")
    for r in range(16): a(f"v_mul_f32 v{16+r}, s44, v{16+r}")
    pack_store(a, 0)
    a(f"""v_cndmask_b32 v38, v38, 0, vcc
    v_cndmask_b32 v39, v39, 0, vcc
    s_lshl_b32 s44, s17, 2
    s_add_u32 s44, s44, s18
    s_lshl_b32 s44, s44, 2
    s_add_u32 s44, s44, s16
    s_lshl_b32 s44, s44, 11
    s_branch K1_ST2""")
    a("K1_EXTRA:\ns_cmp_ge_u32 s18, 2\ns_cbranch_scc1 K1_HT\ns_cmp_lg_u32 s16, 4\ns_cbranch_scc1 K1_FIN")
    a(f"s_mov_b32 s44, {WKL}")
    w_addr(a, 56, 44)
    a("s_cmp_eq_u32 s18, 1\ns_cbranch_scc1 K1_V")
    proj_loop(a, 56, False)
    pack_store(a, 0)
    a(f"""v_mov_b32 v3, 0x3f803f80
    v_mov_b32 v4, 0x3f80
    v_cndmask_b32 v38, v38, v3, vcc
    v_cndmask_b32 v39, v39, v4, vcc
    s_lshl_b32 s44, s17, 12
    s_add_u32 s44, s44, {KV}
    s_branch K1_ST2""")
    a("K1_V:")
    proj_loop(a, 56, True)
    pack_store(a, 0)
    a("""v_and_b32 v4, 31, v1
    v_cmp_eq_u32 vcc, 28, v4
    v_mov_b32 v3, 0x3f803f80
    s_nop 0
    v_cndmask_b32 v3, 0, v3, vcc
    v_cmp_lt_u32 vcc, 27, v4
    s_nop 1""")
    for r in range(8): a(f"v_cndmask_b32 v{32+r}, v{32+r}, v3, vcc")
    a(f"s_lshl_b32 s44, s17, 12\ns_add_u32 s44, s44, {KV+2048}")
    a("""K1_ST2:
    buffer_store_dwordx4 v[32:35], v2, s[36:39], s44 offen
    buffer_store_dwordx4 v[36:39], v2, s[36:39], s44 offen offset:1024
    s_branch K1_FIN""")
    a(f"""K1_HT:
    v_lshrrev_b32 v3, 5, v1
    v_lshlrev_b32 v3, 2, v3
    v_bfe_u32 v4, v1, 2, 2
    v_add_u32 v3, v3, v4
    v_mul_u32_u24 v11, 912, v3
    v_bfe_u32 v4, v1, 4, 1
    v_lshl_add_u32 v11, v4, 5, v11
    v_and_b32 v4, 3, v1
    v_lshl_add_u32 v11, v4, 3, v11
    s_sub_u32 s45, s16, 4
    s_lshl_b32 s44, s45, 6
    s_add_u32 s44, s44, {WKL}
    v_add_u32 v11, s44, v11
    s_lshl_b32 s46, s17, 1
    s_add_u32 s46, s46, s18
    s_sub_u32 s46, s46, 2
    s_lshl_b32 s46, s46, 11
    s_lshr_b32 s44, s45, 1
    s_lshl_b32 s44, s44, 18
    s_add_u32 s46, s46, s44
    s_and_b32 s44, s45, 1
    s_lshl_b32 s44, s44, 10
    s_add_u32 s46, s46, s44
    s_add_u32 s46, s46, {HT}""")
    for i in range(4):
        a(f"ds_read_b64_tr_b16 {R(32+4*i,2)}, v11 offset:{256*i}\nds_read_b64_tr_b16 {R(34+4*i,2)}, v11 offset:{256*i+8*912}")
    for i in range(4):
        if i == 3: a("s_cmp_ge_u32 s45, 2\ns_cbranch_scc1 K1_FIN")
        a(f"s_waitcnt lgkmcnt({6-2*i})\nbuffer_store_dwordx4 {R(32+4*i,4)}, v2, s[36:39], s46 offen\ns_add_u32 s46, s46, {2<<18}")
    a("K1_FIN:")
    stamp_out(a, 0, 3, 16, 36)
    a("K1_END:\ns_endpgm")
```

```python
from gen_common import *
import math
RD2 = opt('rd', 12)
K2_ATT = 4*RD2*2048
K2_CNT = K2_ATT + 49152
K2_LDS = K2_CNT + 64
Q, O, KVR, S, P = 16, 48, 112, 176, 208

def max16(a, dst, s, first):
    if first:
        a(f"v_max3_f32 v{dst}, v{s}, v{s+1}, v{s+2}")
        for r in range(3, 15, 2): a(f"v_max3_f32 v{dst}, v{dst}, v{s+r}, v{s+r+1}")
        a(f"v_max_f32 v{dst}, v{dst}, v{s+15}")
    else:
        for r in range(0, 16, 2): a(f"v_max3_f32 v{dst}, v{dst}, v{s+r}, v{s+r+1}")

def halfmax(a, v, t):
    a(f"v_mov_b32 v{t}, v{v}\ns_nop 1\nv_permlane32_swap_b32 v{v}, v{t}\nv_max_f32 v{v}, v{v}, v{t}")

def kv_load(a, slot, pr=False):
    if pr: a("s_setprio 3")
    for i in range(4):
        a(f"buffer_load_dwordx4 {R(KVR+16*slot+4*i,4)}, v2, s[20:23], s41 offen offset:{1024*i}")
    a("s_add_u32 s41, s41, 4096")
    if pr: a(f"s_setprio {opt('aprio')}")

def attention(a):
    a('s_setprio 3')
    a(f"""s_lshr_b32 s17, s2, 2
    s_and_b32 s18, s2, 3
    s_lshl_b32 s41, s16, 16
    s_add_u32 s41, s41, {KV}
    s_mov_b32 s40, {KV}
    v_and_b32 v3, 31, v1
    v_lshlrev_b32 v3, 2, v3
    s_lshl_b32 s42, s17, 7
    s_add_u32 s42, s42, {GG}
    v_cmp_lt_u32 s[46:47], 31, v1""")
    a("s_mov_b32 s20, s14\ns_mov_b32 s21, s15\ns_add_u32 s22, s41, 65536\ns_mov_b32 s23, 0x20000")
    for i in range(2): a(f"buffer_load_dwordx4 {R(P+4*i,4)}, v2, s[36:39], s40 offen offset:{1024*i}")
    for j in range(4):
        a(f"s_xor_b32 s43, s16, {j}\ns_lshl_b32 s44, s2, 2\ns_add_u32 s43, s43, s44\ns_lshl_b32 s43, s43, 11")
        for i in range(2): a(f"buffer_load_dwordx4 {R(Q+8*j+4*i,4)}, v2, s[36:39], s43 offen offset:{1024*i}")
    a("buffer_load_dword v4, v3, s[36:39], s42 offen")
    for t in range(3): kv_load(a, t)
    red_addr(a, 8, 1, 16, K2_ATT-4096, 12288, 43)
    for j in range(4):
        a(f"s_waitcnt vmcnt({13+2*(3-j)})")
        mfma(a, O+16*j, P, Q+8*j, None); mfma(a, O+16*j, P+4, Q+8*j+4, O+16*j)
    a("s_nop 6")
    for j in range(4):
        max16(a, 5, O+16*j, True); halfmax(a, 5, 6)
        a(f"v_cvt_pk_bf16_f32 v5, -v5, 0\nv_cndmask_b32 v{Q+8*j+6}, v{Q+8*j+6}, v5, s[46:47]")
    for r in range(64): a(f"v_mov_b32 v{O+r}, 0")
    stamp(a, 1)
    a("s_waitcnt vmcnt(8)")
    mfma(a, S, KVR, Q, None); mfma(a, S, KVR+4, Q+4, S)
    a("s_mov_b32 s45, 0\ns_cmp_lg_u32 s45, 0\ns_nop 7\ns_nop 1\nK2_ALOOP:")
    for u in range(16):
        t, j = u >> 2, u & 3
        sc, sn = S + 16*(u & 1), S + 16*((u + 1) & 1)
        pc, pp = P + 8*(u & 1), P + 8*((u + 1) & 1)
        tp, jp = ((u - 1) >> 2) & 3, (u - 1) & 3
        tn, jn = ((u + 1) >> 2) & 3, (u + 1) & 3
        def ex(q, r0=0, r1=4):
            for r in range(r0, r1): a(f"v_exp_f32 v{sc+4*q+r}, v{sc+4*q+r}")
        def cv(q):
            for r in range(2): a(f"v_cvt_pk_bf16_f32 v{pc+2*q+r}, v{sc+4*q+2*r}, v{sc+4*q+2*r+1}")
        if j == 3: a("s_waitcnt vmcnt(8)")
        mfma(a, sn, KVR+16*tn, Q+8*jn, None)
        ex(0)
        mfma(a, sn, KVR+16*tn+4, Q+8*jn+4, sn)
        ex(1); cv(0)
        if u == 0: a("s_cbranch_scc0 K2_AENT")
        mfma(a, O+16*jp, KVR+16*tp+12, pp+4, O+16*jp)
        if u == 0: a("K2_AENT:")
        if j == 0: kv_load(a, tp, opt('kvp', 1))
        ex(2); cv(1); ex(3, 0, 2)
        mfma(a, O+16*j, KVR+16*t+8, pc, O+16*j)
        ex(3, 2, 4); cv(2); cv(3)
        if u == 15: a("s_add_u32 s45, s45, 1\ns_cmp_lt_u32 s45, 4\ns_cbranch_scc1 K2_ALOOP")
    mfma(a, O+48, KVR+48+12, P+12, O+48)
    stamp(a, 2)
    a('s_setprio 3')
    lds_wait(a, 14, 4, 5)
    a("s_nop 7")
    red_write(a, O, 8)
    lds_arrive(a, 14, 8, 5); lds_wait(a, 14, 8, 5)
    stamp(a, 3)
    red_read(a, O, 9)
    a(f"v_mov_b32 v6, v{O+12}\nv_mov_b32 v7, v{O+12}\nv_pk_mul_f32 v[12:13], {R(O,2)}, 0")
    for r in range(2, 16, 2): a(f"v_pk_fma_f32 v[12:13], {R(O+r,2)}, 0, v[12:13]")
    a(f"""v_permlane32_swap_b32 v6, v7
    v_cmp_nlt_f32 vcc, {hx(2.0**-30)}, v7
    v_cmp_ngt_f32 s[48:49], s50, v7
    v_cmp_u_f32 s[52:53], v12, v13
    s_or_b64 vcc, vcc, s[48:49]
    s_or_b64 vcc, vcc, s[52:53]
    s_cbranch_vccnz K2_SLOW
    K2_NORM:
    v_rcp_f32 v7, v7
    s_lshr_b32 s43, s17, 1
    s_lshl_b32 s43, s43, 16
    v_mul_f32 v6, v7, v4
    s_lshl_b32 s44, s18, 2
    s_add_u32 s44, s44, s16
    s_lshl_b32 s44, s44, 12
    s_add_u32 s43, s43, s44
    s_and_b32 s44, s17, 1
    s_lshl_b32 s44, s44, 10
    s_add_u32 s43, s43, s44
    s_add_u32 s43, s43, {OF}""")
    for r in range(0, 16, 2):
        a(f"v_pk_mul_f32 {R(O+r,2)}, {R(O+r,2)}, v[6:7] op_sel_hi:[1,0]")
        a(f"v_cvt_pk_bf16_f32 v{P+r//2}, v{O+r}, v{O+r+1}")
    a(f"""v_cndmask_b32 v{P+6}, v{P+6}, 0, s[46:47]
    v_cndmask_b32 v{P+7}, v{P+7}, 0, s[46:47]
    buffer_store_dwordx4 {R(P,4)}, v2, s[36:39], s43 offen sc1
    buffer_store_dwordx4 {R(P+4,4)}, v2, s[36:39], s43 offen offset:2048 sc1
    s_lshl_b32 s43, s2, 5
    s_add_u32 s43, s43, s16
    s_lshl_b32 s43, s43, 2
    s_add_u32 s43, s43, {CO}""")
    signal(a, 36, 43, 15, 5)
    a("s_branch K2_FIN")
    a(f"K2_SLOW:\nv_cndmask_b32 v{Q+6}, v{Q+6}, 0, s[46:47]\nv_mov_b32 v5, 0xff800000\ns_mov_b32 s41, {KV}\ns_mov_b32 s22, {KV+64*4096}")
    a("K2_S1:")
    kv_load(a, 0); a("s_waitcnt vmcnt(0)")
    mfma(a, S, KVR, Q, None); mfma(a, S, KVR+4, Q+4, S)
    a("s_nop 7\ns_nop 5"); max16(a, 5, S, False)
    a("s_cmp_lt_u32 s41, s22\ns_cbranch_scc1 K2_S1")
    halfmax(a, 5, 6)
    a(f"""v_and_b32 v6, 0xffff0000, v5
    v_sub_f32 v5, v5, v6
    v_and_b32 v7, 0xffff0000, v5
    v_sub_f32 v5, v5, v7
    v_cvt_pk_bf16_f32 v6, -v6, -v7
    v_cvt_pk_bf16_f32 v5, -v5, 0
    v_cndmask_b32 v{Q+6}, v{Q+6}, v6, s[46:47]
    v_cndmask_b32 v{Q+7}, v{Q+7}, v5, s[46:47]
    s_mov_b32 s41, {KV}""")
    for r in range(16): a(f"v_mov_b32 v{O+r}, 0")
    a("K2_S2:")
    kv_load(a, 0); a("s_waitcnt vmcnt(0)")
    mfma(a, S, KVR, Q, None); mfma(a, S, KVR+4, Q+4, S)
    a("s_nop 7\ns_nop 5")
    for r in range(16): a(f"v_exp_f32 v{S+r}, v{S+r}")
    for r in range(8): a(f"v_cvt_pk_bf16_f32 v{P+r}, v{S+2*r}, v{S+2*r+1}")
    a("s_nop 1")
    mfma(a, O, KVR+8, P, O); mfma(a, O, KVR+12, P+4, O)
    a(f"""s_cmp_lt_u32 s41, s22
    s_cbranch_scc1 K2_S2
    s_nop 7
    s_nop 5
    v_mov_b32 v6, v{O+12}
    v_mov_b32 v7, v{O+12}
    s_nop 1
    v_permlane32_swap_b32 v6, v7
    s_nop 1
    s_branch K2_NORM""")

def gemm1(a):
    ACC, TR, DIR = 32, 96, 112
    a(f"""s_and_b32 s17, s2, 7
    s_mul_i32 s18, s17, 49
    s_add_u32 s19, s18, 50
    s_add_u32 s18, s18, 1
    s_lshr_b32 s18, s18, 1
    s_lshr_b32 s19, s19, 1
    s_lshr_b32 s17, s2, 3
    s_add_u32 s17, s17, s18
    s_cmp_ge_u32 s17, s19
    s_cbranch_scc1 K2_PF
    s_mul_i32 s18, s17, 9363
    s_lshr_b32 s18, s18, 16
    s_mul_i32 s19, s18, 7
    s_sub_u32 s19, s17, s19
    s_mul_i32 s40, s16, {512*3584}
    s_lshl_b32 s45, s18, 7
    s_add_u32 s40, s40, s45
    s_lshl_b32 s41, s19, 18
    s_lshl_b32 s46, s16, 16
    s_add_u32 s41, s41, s46
    s_add_u32 s41, s41, {HT}""")
    dma_voff(a, 4, 1, 3, 3584, 47)
    a("""v_lshrrev_b32 v3, 5, v1
    v_lshlrev_b32 v3, 3, v3
    s_lshl_b32 s46, s42, 6
    s_add_u32 s46, s46, s45""")
    srd(a, 20, 4, 2048*3584); srd(a, 24, 6, 3584)
    for g in range(4): a(f"buffer_load_dwordx2 {R(16+2*g,2)}, v3, s[24:27], s46 offen offset:{16*g}")
    red_addr(a, 8, 1, 16, K2_ATT-4096, 12288, 47)

def gelu_out(a):
    ACC = 32
    stamp(a, 1)
    a("s_nop 7\ns_nop 4")
    red_write(a, ACC, 8)
    lds_arrive(a, 14, 0, 25)
    lds_wait(a, 14, 0, 25)
    red_read(a, ACC, 9)
    lds_arrive(a, 14, 4, 25)
    c = 2*math.sqrt(2/math.pi)*math.log2(math.e)
    a(f"""s_mov_b32 s46, {hx(-c*0.044715)}
    v_mov_b32 v24, {hx(-c)}
    s_mul_i32 s56, s19, {112*2048}
    s_lshl_b32 s57, s18, 1
    s_add_u32 s57, s57, s42
    s_lshl_b32 s57, s57, 12
    s_add_u32 s56, s56, s57
    s_add_u32 s56, s56, {UU}
    s_mul_i32 s57, s19, 28
    s_add_u32 s57, s57, s18
    s_lshl_b32 s57, s57, 5
    s_add_u32 s57, s57, s16
    s_lshl_b32 s57, s57, 2
    s_add_u32 s57, s57, {CU}""")
    T = 48
    for r in range(16):
        if r & 1: a(f"v_and_b32 v{T+r}, 0xffff0000, v{16+r//2}")
        else: a(f"v_lshlrev_b32 v{T+r}, 16, v{16+r//2}")
    for r in range(0, 16, 2): a(f"v_pk_add_f32 {R(ACC+r,2)}, {R(ACC+r,2)}, {R(T+r,2)}")
    for r in range(0, 16, 2): a(f"v_pk_mul_f32 {R(T+r,2)}, {R(ACC+r,2)}, {R(ACC+r,2)}")
    for r in range(16): a(f"v_fma_f32 v{T+r}, v{T+r}, s46, v24")
    for r in range(0, 16, 2): a(f"v_pk_mul_f32 {R(T+r,2)}, {R(T+r,2)}, {R(ACC+r,2)}")
    for r in range(16): a(f"v_exp_f32 v{T+r}, v{T+r}")
    for r in range(16): a(f"v_add_f32 v{T+r}, 1.0, v{T+r}")
    for r in range(16): a(f"v_rcp_f32 v{T+r}, v{T+r}")
    for r in range(0, 16, 2): a(f"v_pk_mul_f32 {R(T+r,2)}, {R(T+r,2)}, {R(ACC+r,2)}")
    for r in range(8): a(f"v_cvt_pk_bf16_f32 v{16+r}, v{T+2*r}, v{T+2*r+1}")
    a("buffer_store_dwordx4 v[16:19], v6, s[36:39], s56 offen sc1\nbuffer_store_dwordx4 v[20:23], v6, s[36:39], s56 offen offset:2048 sc1")
    signal(a, 36, 57, 15, 25)

def prefetch_w2(a):
    a(f"""s_lshr_b32 s17, s2, 3
    s_cmp_lt_u32 s17, 25
    s_cbranch_scc1 K2_PFD
    s_lshl_b32 s17, s17, 2
    s_add_u32 s17, s17, s16
    s_sub_u32 s17, s17, 100
    s_and_b32 s18, s2, 7
    s_mul_i32 s19, s17, {16*896}
    s_lshl_b32 s18, s18, 9
    s_lshl_b32 s17, s17, 18
    s_add_u32 s17, s17, s18
    v_lshrrev_b32 v3, 3, v1
    v_lshlrev_b32 v3, 12, v3
    v_and_b32 v4, 7, v1
    v_lshl_add_u32 v3, v4, 6, v3
    v_lshlrev_b32 v4, 6, v1""")
    srd(a, 20, 8, 1792*4096)
    for i in range(8): a(f"buffer_load_dword v{32+i}, v3, s[20:23], s17 offen\ns_add_u32 s17, s17, 32768")
    for i in range(4): a(f"buffer_load_dword v{40+i}, v4, s[76:79], s19 offen\ns_add_u32 s19, s19, 4096")
    a("K2_PFD:")

def gemm2_setup(a):
    ACC, TR, DIR = 32, 96, 112
    a(f"""s_lshr_b32 s34, s2, 3
    s_sub_u32 s34, 31, s34
    s_mul_i32 s30, s34, 9363
    s_lshr_b32 s30, s30, 16
    s_mul_i32 s31, s30, 7
    s_sub_u32 s31, s34, s31
    s_and_b32 s45, s2, 7
    s_lshl_b32 s45, s45, 2
    s_add_u32 s30, s30, s45
    s_mul_i32 s32, s16, {448*4096}
    s_lshl_b32 s45, s30, 7
    s_add_u32 s32, s32, s45
    s_mul_i32 s33, s31, {112*2048}
    s_mul_i32 s46, s16, {28*2048}
    s_add_u32 s33, s33, s46
    s_add_u32 s33, s33, {UU}
    s_mul_i32 s48, s16, {112*896}
    s_lshl_b32 s46, s31, 7
    s_add_u32 s48, s48, s46
    s_lshl_b32 s49, s30, 16
    s_lshl_b32 s46, s16, 14
    s_add_u32 s49, s49, s46
    s_add_u32 s49, s49, {OF}
    s_lshl_b32 s52, s31, 2
    s_add_u32 s52, s52, s16
    s_mul_i32 s52, s52, 896
    s_add_u32 s52, s52, {CU}
    s_lshl_b32 s53, s30, 3
    s_add_u32 s53, s53, s16
    s_lshl_b32 s53, s53, 7
    s_add_u32 s53, s53, {CO}
    s_lshl_b32 s46, s42, 10
    v_add_u32 v28, s46, v2
    v_xor_b32 v29, 1024, v28""")
    dma_voff(a, 214, 1, 3, 4096, 47)
    srd(a, 84, 8, 1792*4096); srd(a, 24, 10, 4096)
    a(f"""s_cmp_lt_u32 s34, 28
    s_cselect_b32 s86, s86, 0
    v_and_b32 v3, 31, v1
    s_lshl_b32 s46, s43, 5
    v_add_u32 v213, s46, v3
    v_lshlrev_b32 v208, 2, v213
    v_xor_b32 v209, 128, v208
    v_lshlrev_b32 v212, 1, v213
    s_lshl_b32 s46, s30, 8
    s_add_u32 s46, s46, {GG}
    buffer_load_dword v208, v208, s[36:39], s46 offen
    buffer_load_dword v209, v209, s[36:39], s46 offen
    buffer_load_ushort v212, v212, s[24:27], s45 offen""")
    tr_addr(a, 26, 1, 3, 44, 43)
    dma_voff(a, 30, 1, 3, 896, 47)

def gemm_chain(a, fill=None):
    ACC, TR, DIR = 32, 96, 112
    def mid():
        gelu_out(a)
        a("K2_G2:")
        stamp(a, 2)
        a("s_cmp_ge_u32 s34, 28\ns_cbranch_scc1 K2_END")
        red_addr(a, 8, 1, 16, 0, RD2*2048, 47)
    def scale():
        stamp(a, 4)
        a("v_sub_f32 v208, 1.0, v208\nv_sub_f32 v210, 1.0, v209\ns_nop 7\ns_nop 1")
        for j in range(4):
            for r in range(0, 16, 2):
                a(f"v_pk_mul_f32 {R(ACC+16*j+r,2)}, {R(ACC+16*j+r,2)}, {R(210 if j & 1 else 208,2)} op_sel_hi:[1,0]")
        a(f"""v_lshlrev_b32 v212, 16, v212
        v_mul_f32 v212, v212, v208
        v_mul_u32_u24 v24, 896, v213
        v_lshrrev_b32 v3, 5, v1
        v_lshl_add_u32 v24, v3, 4, v24
        s_mul_i32 s46, s30, {64*896}
        s_lshl_b32 s47, s31, 7
        s_add_u32 s46, s46, s47
        s_lshl_b32 s47, s42, 6
        s_add_u32 s46, s46, s47""")
        for r in range(0, 16, 2):
            a(f"v_pk_add_f32 {R(ACC+r,2)}, {R(ACC+r,2)}, v[212:213] op_sel_hi:[1,0]")
    steps = [dict(dma=(20, 4, 40, 16*3584), dir=(36, 6, 41, 2048), tra=12, a_is_tr=True) for i in range(32)]
    steps += [dict(dma=(84, 214, 32, 16*4096), dir=(36, 28, 33, 2048), tra=26, a_is_tr=False, dflag='sc1', defer=i < RD2) for i in range(28)]
    steps += [dict(dma=(76, 30, 48, (12 if i & 1 else 16)*896), dir=(36, 6, 49, 2048), tra=12, a_is_tr=True, dflag='sc1', defer=True) for i in range(8)]
    steps[32]['first'] = True; steps[32]['before'] = mid
    steps[32]['gate'] = lambda: (poll(a, 36, 52, 28, 128, 1, 3, 25, opt('nap', 2)), stamp(a, 3))
    steps[60]['before'] = scale
    steps[60]['gate'] = lambda: (poll(a, 36, 53, 8, 512, 1, 3, 25, opt('nap', 2)), stamp(a, 5))
    gemm_steps(a, steps, RD2, ACC, TR, DIR, 44, lambda: gemm2_setup(a), fill)
    if fill is not None: return
    stamp(a, 6)
    a("s_nop 7\ns_nop 4")
    red_write(a, ACC, 8)
    lds_arrive(a, 14, 12, 25); lds_wait(a, 14, 12, 25)
    red_read(a, ACC, 9)
    for r in range(8): a(f"v_cvt_pk_bf16_f32 v{48+r}, v{ACC+2*r}, v{ACC+2*r+1}")
    a("s_nop 1")
    for p in range(2):
        a(f"v_permlane32_swap_b32 v{48+4*p}, v{50+4*p}\nv_permlane32_swap_b32 v{49+4*p}, v{51+4*p}")
    for p in range(2):
        a(f"buffer_store_dwordx4 {R(48+4*p,4)}, v24, s[80:83], s46 offen offset:{32*p}")

def k2(a):
    head(a, "k2_kernel")
    a("s_cmp_ge_u32 s2, 256\ns_cbranch_scc1 K2_END")
    for k in range(7): stamp(a, k)
    a(f"""s_load_dwordx2 s[14:15], s[0:1], 104
    s_load_dwordx8 s[4:11], s[0:1], 48
    s_load_dwordx2 s[12:13], s[0:1], 32
    s_load_dwordx2 s[28:29], s[0:1], 88
    v_lshrrev_b32 v2, 6, v0
    v_and_b32 v1, 63, v0
    s_mov_b32 s50, {hx(2.0**60)}
    v_readfirstlane_b32 s16, v2
    v_mov_b32 v14, {K2_CNT}
    v_mov_b32 v15, 0
    v_lshlrev_b32 v2, 4, v1
    ds_write2_b32 v14, v15, v15 offset0:0 offset1:1
    ds_write2_b32 v14, v15, v15 offset0:2 offset1:3
    s_waitcnt lgkmcnt(0)
    s_barrier""")
    srd(a, 36, 14, WS_END)
    a("s_cmp_ge_u32 s16, 4\ns_cbranch_scc1 K2_GEMM")
    attention(a)
    a(f"""K2_GEMM:
    s_setprio {opt('prio', 2)}
    s_sub_u32 s16, s16, 4
    s_lshr_b32 s42, s16, 1
    s_and_b32 s43, s16, 1
    s_mul_i32 s44, s16, {RD2*2048}
    s_lshl_b32 s46, s43, 10
    v_add_u32 v6, s46, v2
    v_xor_b32 v7, 1024, v6""")
    tr_addr(a, 12, 1, 3, 44, 42)
    srd(a, 76, 12, 448*896); srd(a, 80, 28, 2048*896)
    gemm1(a)
    gemm_chain(a)
    a("s_add_u32 s16, s16, 4\nK2_FIN:")
    stamp_out(a, 1, 7, 16, 36)
    a("K2_END:\ns_endpgm\nK2_PF:")
    prefetch_w2(a)
    lds_arrive(a, 14, 4, 25)
    gemm2_setup(a)
    gemm_chain(a, 32)
    a("s_branch K2_G2")
```

```python
import sys, gen_common
gen_common.DIAG = "--diag" in sys.argv
from gen_common import *
import gen_k1, gen_k2
ref = open('cdna_kernels/%s.s.ref' % NAME).read().split("\n")
hdr = [l for l in ref if l.startswith(";") and "@launch" not in l and "Override" not in l and "grid=ceil" not in l]
a = Asm()
gen_k1.k1(a); gen_k2.k2(a)
out = "\n".join(hdr) + "\n"
out += f"; @launch kernel=k1_kernel grid=(256,1,1) block=(512,1,1) lds={gen_k1.K1_LDS}\n"
out += f"; @launch kernel=k2_kernel grid=(256,1,1) block=(512,1,1) lds={gen_k2.K2_LDS}\n"
out += '.amdgcn_target "amdgcn-amd-amdhsa--gfx950"\n.text\n' + a.text()
out += '.section .rodata,"a"\n.p2align 6\n' + desc("k1_kernel", 80) + desc("k2_kernel", 224)
open(sys.argv[1], 'w').write(out)
```

```python
import struct
NAME = "gated_mix__grouped_kv_mqa__mixer_token_mlp__prompt"
QF, KV, HT, GG, UU, OF, WS_END = 0, 0x200000, 0x240000, 0x400000, 0x410000, 0x600000, 0x800000
CU, CO = 0x5A0000, 0x5A8000
ST = 0x900000

def f2u(x): return struct.unpack('<I', struct.pack('<f', x))[0]
def hx(x): return "0x%x" % f2u(x)

class Asm:
    def __init__(s): s.l = []
    def __call__(s, t):
        for x in t.strip().split("\n"):
            x = x.strip()
            if x: s.l.append(x if x.endswith(":") else "    " + x)
    def text(s): return "\n".join(s.l) + "\n"

def R(b, n): return "v[%d:%d]" % (b, b + n - 1)
def srd(a, d, b, nbytes):
    a(f"s_mov_b32 s{d}, s{b}\ns_mov_b32 s{d+1}, s{b+1}\ns_mov_b32 s{d+2}, {nbytes}\ns_mov_b32 s{d+3}, 0x20000")
def S4(d): return "s[%d:%d]" % (d, d + 3)
def mfma(a, d, x, y, c):
    a(f"v_mfma_f32_32x32x16_bf16 {R(d,16)}, {R(x,4)}, {R(y,4)}, {'0' if c is None else R(c,16)}")
def head(a, name):
    a(f".globl {name}\n.p2align 8\n.type {name},@function\n{name}:")
def desc(name, vgpr):
    return (f".amdhsa_kernel {name}\n  .amdhsa_next_free_vgpr {vgpr}\n  .amdhsa_next_free_sgpr 96\n"
            f"  .amdhsa_accum_offset {min(256,(vgpr+3)//4*4)}\n  .amdhsa_group_segment_fixed_size 0\n"
            "  .amdhsa_kernarg_size 112\n  .amdhsa_user_sgpr_count 2\n"
            "  .amdhsa_user_sgpr_kernarg_segment_ptr 1\n  .amdhsa_system_sgpr_workgroup_id_x 1\n"
            ".end_amdhsa_kernel\n")

import sys
OPT = dict(x.split('=') for x in sys.argv if '=' in x)
def opt(k, d=0): return int(OPT.get(k, d))
DIAG = False
def stamp(a, k):
    if DIAG: a(f"s_memrealtime s[{60+2*k}:{61+2*k}]")
def stamp_out(a, kern, n, wavereg, ws):
    if not DIAG: return
    a(f"s_memrealtime s[{60+2*n}:{61+2*n}]\ns_waitcnt lgkmcnt(0)")
    a(f"s_lshl_b32 s90, s2, 3\ns_add_u32 s90, s90, s{wavereg}\ns_lshl_b32 s90, s90, 5")
    a(f"s_add_u32 s90, s90, {ST + kern*0x20000}\ns_mov_b32 s{ws+2}, 0x1000000\ns_mov_b64 exec, 1\nv_mov_b32 v1, 0")
    for k in range(n + 1):
        a(f"v_mov_b32 v0, s{60+2*k}\nbuffer_store_dword v0, v1, {S4(ws)}, s90 offen offset:{4*k}")

def tr_addr(a, dst, lane, tmp, base_s, sel_s):
    a(f"""v_lshrrev_b32 v{tmp}, 5, v{lane}
    v_lshlrev_b32 v{dst}, 9, v{tmp}
    v_bfe_u32 v{tmp}, v{lane}, 2, 2
    v_lshl_add_u32 v{dst}, v{tmp}, 7, v{dst}
    v_lshrrev_b32 v{tmp}, 1, v{tmp}
    v_xor_b32 v{tmp}, s{sel_s}, v{tmp}
    v_lshl_add_u32 v{dst}, v{tmp}, 6, v{dst}
    v_bfe_u32 v{tmp}, v{lane}, 4, 1
    v_lshl_add_u32 v{dst}, v{tmp}, 5, v{dst}
    v_and_b32 v{tmp}, 3, v{lane}
    v_lshl_add_u32 v{dst}, v{tmp}, 3, v{dst}
    v_add_u32 v{dst}, s{base_s}, v{dst}
    v_xor_b32 v{dst+1}, 64, v{dst}""")

def dma_voff(a, dst, lane, tmp, stride, sreg):
    a(f"""v_lshrrev_b32 v{tmp}, 3, v{lane}
    s_mov_b32 s{sreg}, {stride}
    v_mul_lo_u32 v{dst}, v{tmp}, s{sreg}
    v_lshlrev_b32 v{tmp}, 1, v{tmp}
    v_and_b32 v{tmp}, 4, v{tmp}
    v_xor_b32 v{tmp}, v{tmp}, v{lane}
    v_and_b32 v{tmp}, 7, v{tmp}
    v_lshl_add_u32 v{dst}, v{tmp}, 4, v{dst}
    v_add_u32 v{dst+1}, {8*stride-1024}, v{dst}""")

def gemm_steps(a, steps, RD, ACC, TR, DIR, ring_s, pre=None):
    n = len(steps); ops = []; done = [0]; nd = [0, 0]
    def need(tag):
        k = max(i for i, t in enumerate(ops) if t == tag) + 1
        if k > done[0]:
            a(f"s_waitcnt vmcnt({len(ops)-k})"); done[0] = k
    def ld_dir(i, b):
        d2, v2, s2, inc2 = steps[i]['dir']
        a(f"buffer_load_dwordx4 {R(DIR+8*(i%RD)+4*b,4)}, v{v2+b}, {S4(d2)}, s{s2} offen {steps[i].get('dflag','')}")
        ops.append(('dir', i))
        if b: a(f"s_add_u32 s{s2}, s{s2}, {inc2}")
    def issue(i, act=True):
        st = steps[i]; sd, vo, so, inc = st['dma']; w = nd[0] == i
        if w: a(f"s_add_u32 m0, s{ring_s}, {(i%RD)*2048}")
        if act: ld_dir(i, 0)
        else: a("s_nop 0")
        if w: a(f"buffer_load_dwordx4 v{vo}, {S4(sd)}, s{so} offen lds"); ops.append(('dma', i))
        if act: ld_dir(i, 1); nd[1] = i + 1
        if w:
            a(f"buffer_load_dwordx4 v{vo+1}, {S4(sd)}, s{so} offen offset:1024 lds"); ops.append(('dma', i))
            a(f"s_add_u32 s{so}, s{so}, {inc}"); nd[0] = i + 1
        if act and 'peek' in st: st['peek'](); ops.append(('peek', i))
    def upto(k):
        while nd[1] <= min(k, n-1) and not steps[nd[1]].get('first'): issue(nd[1])
    def trread(i):
        need(('dma', i))
        sl = i % RD; t = TR + 8*(i & 1); ad = steps[i]['tra']
        for blk in range(2):
            for hf in range(2):
                a(f"ds_read_b64_tr_b16 {R(t+4*blk+2*hf,2)}, v{ad+blk} offset:{sl*2048+hf*1024}")
    upto(steps[0]['la'] - 1)
    if pre: pre()
    for i in range(n):
        st = steps[i]; sl = i % RD
        first = i == 0 or st.get('first')
        nxt = i + 1 < n and not steps[i+1].get('first')
        if 'before' in st: st['before']()
        if st.get('first'):
            for k in range(i, i + RD): issue(k, False)
            st['gate'](); done[0] = len(ops)
            issue(i); upto(i + st['la'] - 1)
        if first: trread(i)
        if nxt: trread(i + 1)
        need(('dir', i))
        a(f"s_waitcnt lgkmcnt({4 if nxt else 0})")
        t = TR + 8*(i & 1); d = DIR + 8*sl
        A_, B_ = (t, d) if st['a_is_tr'] else (d, t)
        for j in range(4):
            mfma(a, ACC+16*j, A_+4*(j >> 1), B_+4*(j & 1), None if first else ACC+16*j)
        if 'check' in st: need(('peek', i)); st['check']()
        upto(i + st['la'])

LBL = [0]
def poll(a, ws, off_s, nflag, stride, lane, va, vt, nap=2, part=0):
    LBL[0] += 1; L = f"PL{LBL[0]}"
    if part == 2: a(f"v_cmp_eq_u32 vcc, 0, v{vt}\ns_cbranch_vccz {L}D")
    else: a(f"""v_min_u32 v{vt}, {nflag-1}, v{lane}
    v_lshrrev_b32 v{va}, 2, v{vt}
    v_mul_u32_u24 v{va}, {stride}, v{va}
    v_and_b32 v{vt}, 3, v{vt}
    v_lshl_add_u32 v{va}, v{vt}, 2, v{va}""")
    if part == 1:
        a(f"buffer_load_dword v{vt}, v{va}, {S4(ws)}, s{off_s} offen sc1"); return
    a(f"""s_mov_b32 s55, 0x40000
    {L}:
    buffer_load_dword v{vt}, v{va}, {S4(ws)}, s{off_s} offen sc1
    s_waitcnt vmcnt(0)
    v_cmp_eq_u32 vcc, 0, v{vt}
    s_cbranch_vccz {L}D
    s_sleep {nap}
    s_sub_u32 s55, s55, 1
    s_cbranch_scc0 {L}
    {L}D:""")
def signal(a, ws, off_s, vz, vt):
    a(f"""v_mov_b32 v{vt}, 1
    s_waitcnt vmcnt(0)
    s_mov_b64 exec, 1
    buffer_store_dword v{vt}, v{vz}, {S4(ws)}, s{off_s} offen sc1
    s_mov_b64 exec, -1""")
def lds_arrive(a, va, off, vt):
    a(f"v_mov_b32 v{vt}, 1\ns_waitcnt lgkmcnt(0)\ns_mov_b64 exec, 1\nds_add_u32 v{va}, v{vt} offset:{off}\ns_mov_b64 exec, -1")
def lds_wait(a, va, off, vt, target=4):
    LBL[0] += 1; L = f"LW{LBL[0]}"
    a(f"""{L}:
    ds_read_b32 v{vt}, v{va} offset:{off}
    s_waitcnt lgkmcnt(0)
    v_readfirstlane_b32 s54, v{vt}
    s_cmp_lt_u32 s54, {target}
    s_cbranch_scc1 {L}""")

def red_write(a, ACC, vaddr):
    for j in range(1, 4):
        for g in range(4):
            a(f"ds_write_b128 v{vaddr}, {R(ACC+16*j+4*g,4)} offset:{j*4096+g*1024}")
def red_read(a, ACC, vaddr3):
    for j in range(1, 4):
        for g in range(4):
            a(f"ds_read_b128 {R(ACC+16*j+4*g,4)}, v{vaddr3+j-1} offset:{j*4096+g*1024}")
    for j in range(1, 4):
        a(f"s_waitcnt lgkmcnt({4*(3-j)})")
        for r in range(0, 16, 2):
            a(f"v_pk_add_f32 {R(ACC+r,2)}, {R(ACC+r,2)}, {R(ACC+16*j+r,2)}")
def red_addr(a, dst, lane, w_s, base, stride, tmp_s):
    for j in range(4):
        a(f"s_xor_b32 s{tmp_s}, s{w_s}, {j}\ns_mul_i32 s{tmp_s}, s{tmp_s}, {stride}\ns_add_u32 s{tmp_s}, s{tmp_s}, {base}")
        a(f"v_lshl_add_u32 v{dst+j}, v{lane}, 4, s{tmp_s}")
```

```python
from gen_common import *
import math
XL, WQL, WKL, K1_LDS = 0, 29184, 129536, 155648

def proj_loop(a, stride, swap):
    D = 4
    def rd(ks):
        b = 32 + 8*(ks % D); base = 11 + ks // 14; o = (ks % 14)*16*stride
        a(f"ds_read_b128 {R(b,4)}, v10 offset:{32*ks}")
        a(f"ds_read_b64_tr_b16 {R(b+4,2)}, v{base} offset:{o}")
        a(f"ds_read_b64_tr_b16 {R(b+6,2)}, v{base} offset:{o+4*stride}")
    for ks in range(D - 1): rd(ks)
    for ks in range(28):
        if ks + D - 1 < 28: rd(ks + D - 1)
        a(f"s_waitcnt lgkmcnt({3*min(D-1, 27-ks)})")
        b = 32 + 8*(ks % D)
        x, y = (b, b+4) if swap else (b+4, b)
        mfma(a, 16, x, y, None if ks == 0 else 16)
    a("s_nop 7\ns_nop 4")

def w_addr(a, stride, base_expr_s):
    a(f"""v_lshrrev_b32 v3, 5, v1
    v_lshlrev_b32 v3, 3, v3
    v_bfe_u32 v4, v1, 2, 2
    v_add_u32 v3, v3, v4
    v_mul_u32_u24 v11, {stride}, v3
    v_bfe_u32 v4, v1, 4, 1
    v_lshl_add_u32 v11, v4, 5, v11
    v_and_b32 v4, 3, v1
    v_lshl_add_u32 v11, v4, 3, v11
    v_add_u32 v11, s{base_expr_s}, v11
    v_add_u32 v12, {14*16*stride}, v11""")

def pack_store(a, soff):
    for r in range(8): a(f"v_cvt_pk_bf16_f32 v{32+r}, v{16+2*r}, v{17+2*r}")

def rowsum16(a, v):
    for sh in (8, 4, 2, 1):
        a(f"s_nop 1\nv_add_f32_dpp v{v}, v{v}, v{v} row_ror:{sh} row_mask:0xf bank_mask:0xf")

def k1(a):
    head(a, "k1_kernel")
    a("s_cmp_ge_u32 s2, 256\ns_cbranch_scc1 K1_END")
    stamp(a, 0)
    a("""s_load_dwordx4 s[4:7], s[0:1], 0
    s_load_dwordx4 s[8:11], s[0:1], 16
    s_load_dwordx2 s[12:13], s[0:1], 80
    s_load_dwordx2 s[14:15], s[0:1], 104
    s_load_dwordx2 s[48:49], s[0:1], 48
    v_lshrrev_b32 v2, 6, v0
    v_and_b32 v1, 63, v0
    s_and_b32 s17, s2, 7
    v_readfirstlane_b32 s16, v2
    s_lshl_b32 s17, s17, 3
    s_lshr_b32 s18, s2, 5
    s_add_u32 s17, s17, s18
    s_bfe_u32 s18, s2, 0x20003
    v_lshlrev_b32 v2, 4, v1
    s_lshl_b32 s40, s17, 5
    s_lshl_b32 s41, s16, 2
    s_add_u32 s40, s40, s41
    s_mul_i32 s40, s40, 896
    s_mul_i32 s41, s41, 912
    v_mul_u32_u24 v3, 4682, v0
    v_lshrrev_b32 v3, 16, v3
    v_mul_u32_u24 v4, 14, v3
    v_sub_u32 v4, v0, v4
    v_mul_u32_u24 v5, 896, v3
    v_lshl_add_u32 v5, v4, 4, v5
    s_mul_i32 s42, s18, 224
    s_lshl_b32 s43, s16, 10
    s_waitcnt lgkmcnt(0)""")
    srd(a, 20, 4, 2048*896); srd(a, 24, 6, 448*896); srd(a, 36, 14, WS_END)
    a(f"""s_cmp_lg_u32 s16, 7
    s_cbranch_scc1 K1_NZ
    s_lshl_b32 s44, s2, 7
    s_add_u32 s44, s44, {CU}
    v_mov_b32 v6, 0
    v_lshlrev_b32 v7, 2, v1
    s_mov_b64 exec, 15
    buffer_store_dword v6, v7, s[36:39], s44 offen
    s_add_u32 s44, s44, {CO-CU}
    buffer_store_dword v6, v7, s[36:39], s44 offen
    K1_NZ:
    s_mov_b32 exec_lo, -1
    s_mov_b32 exec_hi, 0xffffff""")
    for r in range(4):
        a(f"s_add_u32 m0, s41, {XL+r*912}\ns_add_u32 s44, s40, {r*896}\nbuffer_load_dwordx4 v2, s[20:23], s44 offen lds")
    a("s_mov_b32 exec_hi, -1")
    a("s_cmp_lt_u32 s16, 4\ns_cbranch_scc1 K1_WQ\ns_cmp_lt_u32 s18, 2\ns_cbranch_scc1 K1_NOLN0")
    srd(a, 32, 12, 896)
    a("""s_sub_u32 s45, s16, 4
    s_lshl_b32 s45, s45, 2
    v_lshrrev_b32 v6, 4, v1
    v_add_u32 v6, s45, v6
    v_and_b32 v7, 15, v1
    v_lshlrev_b32 v7, 3, v7
    v_mul_u32_u24 v8, 896, v6
    v_add_u32 v8, v8, v7
    s_lshl_b32 s46, s17, 1
    s_add_u32 s46, s46, s18
    s_sub_u32 s46, s46, 2
    s_mul_i32 s47, s46, 14336""")
    for i in range(7): a(f"buffer_load_dwordx2 {R(16+2*i,2)}, v8, s[20:23], s47 offen offset:{128*i}")
    for i in range(7): a(f"buffer_load_dwordx2 {R(64+2*i,2)}, v7, s[32:35], 0 offen offset:{128*i}")
    a("K1_NOLN0:\ns_cmp_eq_u32 s16, 7\ns_cbranch_scc1 K1_W7")
    a("K1_WQ:")
    for i in range(14):
        a(f"s_add_u32 m0, s43, {WQL+i*7168}\ns_add_u32 s44, s42, {i*28672}\nbuffer_load_dwordx4 v5, s[24:27], s44 offen lds")
    a("s_cmp_lt_u32 s16, 4\ns_cbranch_scc1 K1_BAR\ns_cmp_lt_u32 s18, 2\ns_cbranch_scc1 K1_BAR\ns_branch K1_LN0")
    a("K1_W7:\ns_cmp_ge_u32 s18, 2\ns_cbranch_scc1 K1_LN0")
    a("s_cmp_eq_u32 s18, 0\ns_cselect_b32 s28, s8, s10\ns_cselect_b32 s29, s9, s11\ns_mov_b32 s30, 25088\ns_mov_b32 s31, 0x20000")
    for i in range(25):
        if i % 4 == 0: a(f"s_mov_b32 m0, {WKL+i*1024}\ns_mov_b32 s44, {i*1024}")
        a(f"buffer_load_dwordx4 v2, s[28:31], s44 offen offset:{(i%4)*1024} lds")
    a("s_branch K1_BAR")
    a("K1_LN0:")
    if opt('wu', 1): a("s_mov_b64 exec, 0\ns_branch K1_LN")
    a("K1_LN1:\ns_mov_b64 exec, -1\ns_waitcnt vmcnt(14)\ns_cmp_lg_u32 s16, 7\ns_cbranch_scc1 K1_LN\ns_waitcnt vmcnt(0)")
    a("K1_LN:")
    a("v_mov_b32 v62, 0\nv_mov_b32 v60, 0\nv_mov_b32 v61, 0")
    for i in range(14):
        a(f"v_lshlrev_b32 v{32+2*i}, 16, v{16+i}\nv_and_b32 v{33+2*i}, 0xffff0000, v{16+i}")
        a(f"v_dot2_f32_bf16 v62, v{16+i}, v{64+i}, v62")
        a(f"v_pk_add_f32 v[60:61], v[60:61], {R(32+2*i,2)}")
    a("v_add_f32 v60, v60, v61")
    rowsum16(a, 60); rowsum16(a, 62)
    a(f"v_mul_f32 v60, {hx(1/448)}, v60\nv_mov_b32 v14, 0\nv_mov_b32 v15, 0")
    for i in range(14):
        a(f"v_pk_add_f32 {R(32+2*i,2)}, {R(32+2*i,2)}, v[60:61] op_sel_hi:[1,0] neg_lo:[0,1] neg_hi:[0,1]")
        a(f"v_pk_fma_f32 v[14:15], {R(32+2*i,2)}, {R(32+2*i,2)}, v[14:15]")
    a("v_add_f32 v14, v14, v15")
    rowsum16(a, 14)
    a(f"""v_mov_b32 v15, {hx(1e-5)}
    v_fmac_f32 v15, {hx(1/448)}, v14
    v_rsq_f32 v60, v15
    v_mul_f32 v62, {hx(-math.log2(math.e))}, v62
    v_exp_f32 v62, v62
    v_mul_u32_u24 v9, 912, v6
    v_add_f32 v62, 1.0, v62
    v_rcp_f32 v62, v62
    v_add_u32 v9, v9, v7
    v_add_u32 v9, {WKL}, v9""")
    for i in range(14):
        a(f"v_pk_mul_f32 {R(32+2*i,2)}, {R(32+2*i,2)}, v[60:61] op_sel_hi:[1,0]")
        a(f"v_cvt_pk_bf16_f32 v{16+i}, v{32+2*i}, v{33+2*i}")
        if i & 1: a(f"ds_write_b64 v9, {R(15+i,2)} offset:{128*(i//2)}")
    a(f"""s_cbranch_execz K1_LN1
    v_lshlrev_b32 v6, 2, v6
    s_lshl_b32 s47, s46, 6
    s_add_u32 s47, s47, {GG}
    s_mov_b32 exec_lo, 0x10001
    s_mov_b32 exec_hi, 0x10001
    buffer_store_dword v62, v6, s[36:39], s47 offen
    s_branch K1_BAR1""")
    a("K1_BAR:")
    a("""v_and_b32 v3, 31, v1
    v_mul_u32_u24 v10, 912, v3
    v_lshrrev_b32 v3, 5, v1
    v_lshl_add_u32 v10, v3, 4, v10
    v_cmp_lt_u32 vcc, 31, v1""")
    def pf():
        a(f"""s_mov_b32 s50, {2048*3584}
        s_mov_b32 s51, 0x20000
        s_add_u32 s52, s2, {opt('xs')}
        s_and_b32 s52, s52, 7
        s_mul_i32 s52, s52, 7
        s_lshr_b32 s52, s52, 1
        s_lshl_b32 s52, s52, 7
        s_lshr_b32 s53, s2, 3
        s_mul_i32 s53, s53, {64*3584}
        s_add_u32 s52, s52, s53
        v_lshrrev_b32 v13, 3, v0
        v_mul_u32_u24 v13, 3584, v13
        v_and_b32 v14, 7, v0
        v_lshl_add_u32 v13, v14, 6, v13
        s_bfe_u32 s53, s2, 0x30003
        s_cmp_lt_u32 s53, {opt('pfh', 8)}
        s_cselect_b32 s50, s50, 0
        buffer_load_dword v13, v13, s[48:51], s52 offen""")
    if opt('wu', 1): a("s_mov_b64 exec, 0\ns_cmp_eq_u32 s16, 5\ns_cbranch_scc1 K1_HT\ns_branch K1_GO")
    a("K1_BAR1:\ns_mov_b64 exec, -1")
    stamp(a, 1)
    if opt('pf1') == 1: pf()
    a(f"s_waitcnt vmcnt({1 if opt('pf1') == 1 else 0}) lgkmcnt(0)\ns_barrier")
    if opt('pf1') == 2: pf()
    stamp(a, 2)
    a("K1_GO:")
    a("s_cmp_ge_u32 s16, 4\ns_cbranch_scc1 K1_EXTRA")
    a(f"s_mul_i32 s44, s16, 56\ns_add_u32 s44, s44, {WQL}")
    w_addr(a, 224, 44)
    proj_loop(a, 224, False)
    a(f"s_mov_b32 s44, {hx(math.log2(math.e)/math.sqrt(28))}")
    for r in range(16): a(f"v_mul_f32 v{16+r}, s44, v{16+r}")
    pack_store(a, 0)
    a(f"""v_cndmask_b32 v38, v38, 0, vcc
    v_cndmask_b32 v39, v39, 0, vcc
    s_lshl_b32 s44, s17, 2
    s_add_u32 s44, s44, s18
    s_lshl_b32 s44, s44, 2
    s_add_u32 s44, s44, s16
    s_lshl_b32 s44, s44, 11
    s_branch K1_ST2""")
    a("K1_EXTRA:\ns_cmp_ge_u32 s18, 2\ns_cbranch_scc1 K1_HT\ns_cmp_lg_u32 s16, 4\ns_cbranch_scc1 K1_FIN")
    a(f"s_mov_b32 s44, {WKL}")
    w_addr(a, 56, 44)
    a("s_cmp_eq_u32 s18, 1\ns_cbranch_scc1 K1_V")
    proj_loop(a, 56, False)
    pack_store(a, 0)
    a(f"""v_mov_b32 v3, 0x3f803f80
    v_mov_b32 v4, 0x3f80
    v_cndmask_b32 v38, v38, v3, vcc
    v_cndmask_b32 v39, v39, v4, vcc
    s_lshl_b32 s44, s17, 12
    s_add_u32 s44, s44, {KV}
    s_branch K1_ST2""")
    a("K1_V:")
    proj_loop(a, 56, True)
    pack_store(a, 0)
    a("""v_and_b32 v4, 31, v1
    v_cmp_eq_u32 vcc, 28, v4
    v_mov_b32 v3, 0x3f803f80
    s_nop 0
    v_cndmask_b32 v3, 0, v3, vcc
    v_cmp_lt_u32 vcc, 27, v4
    s_nop 1""")
    for r in range(8): a(f"v_cndmask_b32 v{32+r}, v{32+r}, v3, vcc")
    a(f"s_lshl_b32 s44, s17, 12\ns_add_u32 s44, s44, {KV+2048}")
    a("""K1_ST2:
    buffer_store_dwordx4 v[32:35], v2, s[36:39], s44 offen
    buffer_store_dwordx4 v[36:39], v2, s[36:39], s44 offen offset:1024
    s_branch K1_FIN""")
    a(f"""K1_HT:
    v_lshrrev_b32 v3, 5, v1
    v_lshlrev_b32 v3, 2, v3
    v_bfe_u32 v4, v1, 2, 2
    v_add_u32 v3, v3, v4
    v_mul_u32_u24 v11, 912, v3
    v_bfe_u32 v4, v1, 4, 1
    v_lshl_add_u32 v11, v4, 5, v11
    v_and_b32 v4, 3, v1
    v_lshl_add_u32 v11, v4, 3, v11
    s_sub_u32 s45, s16, 4
    s_lshl_b32 s44, s45, 6
    s_add_u32 s44, s44, {WKL}
    v_add_u32 v11, s44, v11
    s_lshl_b32 s46, s17, 1
    s_add_u32 s46, s46, s18
    s_sub_u32 s46, s46, 2
    s_lshl_b32 s46, s46, 11
    s_lshr_b32 s44, s45, 1
    s_lshl_b32 s44, s44, 18
    s_add_u32 s46, s46, s44
    s_and_b32 s44, s45, 1
    s_lshl_b32 s44, s44, 10
    s_add_u32 s46, s46, s44
    s_add_u32 s46, s46, {HT}""")
    for i in range(4):
        a(f"ds_read_b64_tr_b16 {R(32+4*i,2)}, v11 offset:{256*i}\nds_read_b64_tr_b16 {R(34+4*i,2)}, v11 offset:{256*i+8*912}")
    for i in range(4):
        if i == 3: a("s_cmp_ge_u32 s45, 2\ns_cbranch_scc1 K1_FIN")
        a(f"s_waitcnt lgkmcnt({6-2*i})\nbuffer_store_dwordx4 {R(32+4*i,4)}, v2, s[36:39], s46 offen\ns_add_u32 s46, s46, {2<<18}")
    a("K1_FIN:\ns_cbranch_execz K1_BAR1")
    stamp_out(a, 0, 3, 16, 36)
    a("K1_END:\ns_endpgm")
```

```python
from gen_common import *
import math
RD2 = opt('rd', 12)
K2_ATT = 4*RD2*2048
K2_CNT = K2_ATT + 49152
K2_LDS = K2_CNT + 64
Q, O, KVR, S, P = 16, 48, 112, 176, 208

def max16(a, dst, s, first):
    if first:
        a(f"v_max3_f32 v{dst}, v{s}, v{s+1}, v{s+2}")
        for r in range(3, 15, 2): a(f"v_max3_f32 v{dst}, v{dst}, v{s+r}, v{s+r+1}")
        a(f"v_max_f32 v{dst}, v{dst}, v{s+15}")
    else:
        for r in range(0, 16, 2): a(f"v_max3_f32 v{dst}, v{dst}, v{s+r}, v{s+r+1}")

def halfmax(a, v, t):
    a(f"v_mov_b32 v{t}, v{v}\ns_nop 1\nv_permlane32_swap_b32 v{v}, v{t}\nv_max_f32 v{v}, v{v}, v{t}")

def kv_load(a, slot, pr=False):
    if pr: a("s_setprio 3")
    for i in range(4):
        a(f"buffer_load_dwordx4 {R(KVR+16*slot+4*i,4)}, v2, s[20:23], s41 offen offset:{1024*i}")
    a("s_add_u32 s41, s41, 4096")
    if pr: a(f"s_setprio {opt('aprio')}")

def attention(a):
    a('s_setprio 3')
    a(f"""s_lshr_b32 s17, s2, 2
    s_and_b32 s18, s2, 3
    s_lshl_b32 s41, s16, 16
    s_add_u32 s41, s41, {KV}
    s_mov_b32 s40, {KV}
    v_and_b32 v3, 31, v1
    v_lshlrev_b32 v3, 2, v3
    s_lshl_b32 s42, s17, 7
    s_add_u32 s42, s42, {GG}
    v_cmp_lt_u32 s[46:47], 31, v1""")
    a("s_mov_b32 s20, s14\ns_mov_b32 s21, s15\ns_add_u32 s22, s41, 65536\ns_mov_b32 s23, 0x20000")
    for i in range(2): a(f"buffer_load_dwordx4 {R(P+4*i,4)}, v2, s[36:39], s40 offen offset:{1024*i}")
    for j in range(4):
        a(f"s_xor_b32 s43, s16, {j}\ns_lshl_b32 s44, s2, 2\ns_add_u32 s43, s43, s44\ns_lshl_b32 s43, s43, 11")
        for i in range(2): a(f"buffer_load_dwordx4 {R(Q+8*j+4*i,4)}, v2, s[36:39], s43 offen offset:{1024*i}")
    a("buffer_load_dword v4, v3, s[36:39], s42 offen")
    for t in range(3): kv_load(a, t)
    red_addr(a, 8, 1, 16, K2_ATT-4096, 12288, 43)
    for j in range(4):
        a(f"s_waitcnt vmcnt({13+2*(3-j)})")
        mfma(a, O+16*j, P, Q+8*j, None); mfma(a, O+16*j, P+4, Q+8*j+4, O+16*j)
    a("s_nop 6")
    for j in range(4):
        max16(a, 5, O+16*j, True); halfmax(a, 5, 6)
        a(f"v_cvt_pk_bf16_f32 v5, -v5, 0\nv_cndmask_b32 v{Q+8*j+6}, v{Q+8*j+6}, v5, s[46:47]")
    for r in range(64): a(f"v_mov_b32 v{O+r}, 0")
    stamp(a, 1)
    a(f"s_setprio {opt('aprio')}")
    a("s_waitcnt vmcnt(8)")
    mfma(a, S, KVR, Q, None); mfma(a, S, KVR+4, Q+4, S)
    a("s_mov_b32 s45, 0\ns_cmp_lg_u32 s45, 0\ns_nop 7\ns_nop 1\nK2_ALOOP:")
    for u in range(16):
        t, j = u >> 2, u & 3
        sc, sn = S + 16*(u & 1), S + 16*((u + 1) & 1)
        pc, pp = P + 8*(u & 1), P + 8*((u + 1) & 1)
        tp, jp = ((u - 1) >> 2) & 3, (u - 1) & 3
        tn, jn = ((u + 1) >> 2) & 3, (u + 1) & 3
        def ex(q, r0=0, r1=4):
            for r in range(r0, r1): a(f"v_exp_f32 v{sc+4*q+r}, v{sc+4*q+r}")
        def cv(q):
            for r in range(2): a(f"v_cvt_pk_bf16_f32 v{pc+2*q+r}, v{sc+4*q+2*r}, v{sc+4*q+2*r+1}")
        if j == 3: a("s_waitcnt vmcnt(8)")
        mfma(a, sn, KVR+16*tn, Q+8*jn, None)
        ex(0)
        mfma(a, sn, KVR+16*tn+4, Q+8*jn+4, sn)
        ex(1); cv(0)
        if u == 0: a("s_cbranch_scc0 K2_AENT")
        mfma(a, O+16*jp, KVR+16*tp+12, pp+4, O+16*jp)
        if u == 0: a("K2_AENT:")
        if j == 0: kv_load(a, tp, opt('kvp', 1))
        ex(2); cv(1); ex(3, 0, 2)
        mfma(a, O+16*j, KVR+16*t+8, pc, O+16*j)
        ex(3, 2, 4); cv(2); cv(3)
        if u == 15: a("s_add_u32 s45, s45, 1\ns_cmp_lt_u32 s45, 4\ns_cbranch_scc1 K2_ALOOP")
    mfma(a, O+48, KVR+48+12, P+12, O+48)
    stamp(a, 2)
    a('s_setprio 3')
    lds_wait(a, 14, 4, 5)
    a("s_nop 7")
    red_write(a, O, 8)
    lds_arrive(a, 14, 8, 5); lds_wait(a, 14, 8, 5)
    stamp(a, 3)
    red_read(a, O, 9)
    a(f"v_mov_b32 v6, v{O+12}\nv_mov_b32 v7, v{O+12}\nv_pk_mul_f32 v[12:13], {R(O,2)}, 0")
    for r in range(2, 16, 2): a(f"v_pk_fma_f32 v[12:13], {R(O+r,2)}, 0, v[12:13]")
    a(f"""v_permlane32_swap_b32 v6, v7
    v_cmp_nlt_f32 vcc, {hx(2.0**-30)}, v7
    v_cmp_ngt_f32 s[48:49], s50, v7
    v_cmp_u_f32 s[52:53], v12, v13
    s_or_b64 vcc, vcc, s[48:49]
    s_or_b64 vcc, vcc, s[52:53]
    {'s_branch' if opt('force') else 's_cbranch_vccnz'} K2_SLOW
    K2_NORM:
    v_rcp_f32 v7, v7
    s_lshr_b32 s43, s17, 1
    s_lshl_b32 s43, s43, 16
    v_mul_f32 v6, v7, v4
    s_lshl_b32 s44, s18, 2
    s_add_u32 s44, s44, s16
    s_lshl_b32 s44, s44, 12
    s_add_u32 s43, s43, s44
    s_and_b32 s44, s17, 1
    s_lshl_b32 s44, s44, 10
    s_add_u32 s43, s43, s44
    s_add_u32 s43, s43, {OF}""")
    for r in range(0, 16, 2):
        a(f"v_pk_mul_f32 {R(O+r,2)}, {R(O+r,2)}, v[6:7] op_sel_hi:[1,0]")
        a(f"v_cvt_pk_bf16_f32 v{P+r//2}, v{O+r}, v{O+r+1}")
    a(f"""v_cndmask_b32 v{P+6}, v{P+6}, 0, s[46:47]
    v_cndmask_b32 v{P+7}, v{P+7}, 0, s[46:47]
    buffer_store_dwordx4 {R(P,4)}, v2, s[36:39], s43 offen sc1
    buffer_store_dwordx4 {R(P+4,4)}, v2, s[36:39], s43 offen offset:2048 sc1
    s_lshl_b32 s43, s2, 5
    s_add_u32 s43, s43, s16
    s_lshl_b32 s43, s43, 2
    s_add_u32 s43, s43, {CO}""")
    signal(a, 36, 43, 15, 5)
    a("s_branch K2_FIN")
    a(f"K2_SLOW:\nv_cndmask_b32 v{Q+6}, v{Q+6}, 0, s[46:47]\nv_mov_b32 v5, 0xff800000\ns_mov_b32 s41, {KV}\ns_mov_b32 s22, {KV+64*4096}")
    a("K2_S1:")
    kv_load(a, 0); a("s_waitcnt vmcnt(0)")
    mfma(a, S, KVR, Q, None); mfma(a, S, KVR+4, Q+4, S)
    a("s_nop 7\ns_nop 5"); max16(a, 5, S, False)
    a("s_cmp_lt_u32 s41, s22\ns_cbranch_scc1 K2_S1")
    halfmax(a, 5, 6)
    a(f"""v_and_b32 v6, 0xffff0000, v5
    v_sub_f32 v5, v5, v6
    v_and_b32 v7, 0xffff0000, v5
    v_sub_f32 v5, v5, v7
    v_cvt_pk_bf16_f32 v6, -v6, -v7
    v_cvt_pk_bf16_f32 v5, -v5, 0
    v_cndmask_b32 v{Q+6}, v{Q+6}, v6, s[46:47]
    v_cndmask_b32 v{Q+7}, v{Q+7}, v5, s[46:47]
    s_mov_b32 s41, {KV}""")
    for r in range(16): a(f"v_mov_b32 v{O+r}, 0")
    a("K2_S2:")
    kv_load(a, 0); a("s_waitcnt vmcnt(0)")
    mfma(a, S, KVR, Q, None); mfma(a, S, KVR+4, Q+4, S)
    a("s_nop 7\ns_nop 5")
    for r in range(16): a(f"v_exp_f32 v{S+r}, v{S+r}")
    for r in range(8): a(f"v_cvt_pk_bf16_f32 v{P+r}, v{S+2*r}, v{S+2*r+1}")
    a("s_nop 1")
    mfma(a, O, KVR+8, P, O); mfma(a, O, KVR+12, P+4, O)
    a(f"""s_cmp_lt_u32 s41, s22
    s_cbranch_scc1 K2_S2
    s_nop 7
    s_nop 5
    v_mov_b32 v6, v{O+12}
    v_mov_b32 v7, v{O+12}
    s_nop 1
    v_permlane32_swap_b32 v6, v7
    s_nop 1
    s_branch K2_NORM""")

def gemm1(a):
    ACC, TR, DIR = 32, 96, 112
    a(f"""s_and_b32 s17, s2, 7
    s_mul_i32 s18, s17, 49
    s_add_u32 s19, s18, 50
    s_add_u32 s18, s18, 1
    s_lshr_b32 s18, s18, 1
    s_lshr_b32 s19, s19, 1
    s_lshr_b32 s17, s2, 3
    s_add_u32 s17, s17, s18
    s_cmp_ge_u32 s17, s19
    s_cbranch_scc1 K2_PF
    s_mul_i32 s18, s17, 9363
    s_lshr_b32 s18, s18, 16
    s_mul_i32 s19, s18, 7
    s_sub_u32 s19, s17, s19
    s_mul_i32 s40, s16, {512*3584}
    s_lshl_b32 s45, s18, 7
    s_add_u32 s40, s40, s45
    s_lshl_b32 s41, s19, 18
    s_lshl_b32 s46, s16, 16
    s_add_u32 s41, s41, s46
    s_add_u32 s41, s41, {HT}""")
    dma_voff(a, 4, 1, 3, 3584, 47)
    a("""v_lshrrev_b32 v3, 5, v1
    v_lshlrev_b32 v3, 3, v3
    s_lshl_b32 s46, s42, 6
    s_add_u32 s46, s46, s45""")
    srd(a, 20, 4, 2048*3584); srd(a, 24, 6, 3584)
    for g in range(4): a(f"buffer_load_dwordx2 {R(16+2*g,2)}, v3, s[24:27], s46 offen offset:{16*g}")
    red_addr(a, 8, 1, 16, K2_ATT-4096, 12288, 47)

def gelu_out(a):
    ACC = 32
    stamp(a, 1)
    a("s_nop 7\ns_nop 4")
    red_write(a, ACC, 8)
    lds_arrive(a, 14, 0, 25)
    lds_wait(a, 14, 0, 25)
    red_read(a, ACC, 9)
    lds_arrive(a, 14, 4, 25)
    c = 2*math.sqrt(2/math.pi)*math.log2(math.e)
    a(f"""s_mov_b32 s46, {hx(-c*0.044715)}
    v_mov_b32 v24, {hx(-c)}
    s_mul_i32 s56, s19, {112*2048}
    s_lshl_b32 s57, s18, 1
    s_add_u32 s57, s57, s42
    s_lshl_b32 s57, s57, 12
    s_add_u32 s56, s56, s57
    s_add_u32 s56, s56, {UU}
    s_mul_i32 s57, s19, 28
    s_add_u32 s57, s57, s18
    s_lshl_b32 s57, s57, 5
    s_add_u32 s57, s57, s16
    s_lshl_b32 s57, s57, 2
    s_add_u32 s57, s57, {CU}""")
    T = 48
    for r in range(16):
        if r & 1: a(f"v_and_b32 v{T+r}, 0xffff0000, v{16+r//2}")
        else: a(f"v_lshlrev_b32 v{T+r}, 16, v{16+r//2}")
    for r in range(0, 16, 2): a(f"v_pk_add_f32 {R(ACC+r,2)}, {R(ACC+r,2)}, {R(T+r,2)}")
    for r in range(0, 16, 2): a(f"v_pk_mul_f32 {R(T+r,2)}, {R(ACC+r,2)}, {R(ACC+r,2)}")
    for r in range(16): a(f"v_fma_f32 v{T+r}, v{T+r}, s46, v24")
    for r in range(0, 16, 2): a(f"v_pk_mul_f32 {R(T+r,2)}, {R(T+r,2)}, {R(ACC+r,2)}")
    for r in range(16): a(f"v_exp_f32 v{T+r}, v{T+r}")
    for r in range(16): a(f"v_add_f32 v{T+r}, 1.0, v{T+r}")
    for r in range(16): a(f"v_rcp_f32 v{T+r}, v{T+r}")
    for r in range(0, 16, 2): a(f"v_pk_mul_f32 {R(T+r,2)}, {R(T+r,2)}, {R(ACC+r,2)}")
    for r in range(8): a(f"v_cvt_pk_bf16_f32 v{16+r}, v{T+2*r}, v{T+2*r+1}")
    a("buffer_store_dwordx4 v[16:19], v6, s[36:39], s56 offen sc1\nbuffer_store_dwordx4 v[20:23], v6, s[36:39], s56 offen offset:2048 sc1")
    signal(a, 36, 57, 15, 25)

def prefetch_w2(a):
    a(f"""s_lshr_b32 s17, s2, 3
    s_cmp_lt_u32 s17, 25
    s_cbranch_scc1 K2_PFD
    s_lshl_b32 s17, s17, 2
    s_add_u32 s17, s17, s16
    s_sub_u32 s17, s17, 100
    s_and_b32 s18, s2, 7
    s_mul_i32 s19, s17, {16*896}
    s_lshl_b32 s18, s18, 9
    s_lshl_b32 s17, s17, 18
    s_add_u32 s17, s17, s18
    v_lshrrev_b32 v3, 3, v1
    v_lshlrev_b32 v3, 12, v3
    v_and_b32 v4, 7, v1
    v_lshl_add_u32 v3, v4, 6, v3
    v_lshlrev_b32 v4, 6, v1""")
    srd(a, 20, 8, 1792*4096)
    for i in range(8): a(f"buffer_load_dword v{32+i}, v3, s[20:23], s17 offen\ns_add_u32 s17, s17, 32768")
    for i in range(4): a(f"buffer_load_dword v{40+i}, v4, s[76:79], s19 offen\ns_add_u32 s19, s19, 4096")
    a("K2_PFD:")

def gemm2_setup(a):
    ACC, TR, DIR = 32, 96, 112
    a(f"""s_lshr_b32 s34, s2, 3
    s_sub_u32 s34, 31, s34
    s_mul_i32 s30, s34, 9363
    s_lshr_b32 s30, s30, 16
    s_mul_i32 s31, s30, 7
    s_sub_u32 s31, s34, s31
    s_and_b32 s45, s2, 7
    s_lshl_b32 s45, s45, 2
    s_add_u32 s30, s30, s45
    s_mul_i32 s32, s16, {448*4096}
    s_lshl_b32 s45, s30, 7
    s_add_u32 s32, s32, s45
    s_mul_i32 s33, s31, {112*2048}
    s_mul_i32 s46, s16, {28*2048}
    s_add_u32 s33, s33, s46
    s_add_u32 s33, s33, {UU}
    s_mul_i32 s48, s16, {112*896}
    s_lshl_b32 s46, s31, 7
    s_add_u32 s48, s48, s46
    s_lshl_b32 s49, s30, 16
    s_lshl_b32 s46, s16, 14
    s_add_u32 s49, s49, s46
    s_add_u32 s49, s49, {OF}
    s_lshl_b32 s52, s31, 2
    s_add_u32 s52, s52, s16
    s_mul_i32 s52, s52, 896
    s_add_u32 s52, s52, {CU}
    s_lshl_b32 s53, s30, 3
    s_add_u32 s53, s53, s16
    s_lshl_b32 s53, s53, 7
    s_add_u32 s53, s53, {CO}
    s_lshl_b32 s46, s42, 10
    v_add_u32 v28, s46, v2
    v_xor_b32 v29, 1024, v28""")
    dma_voff(a, 214, 1, 3, 4096, 47)
    srd(a, 84, 8, 1792*4096); srd(a, 24, 10, 4096)
    a(f"""s_cmp_lt_u32 s34, 28
    s_cselect_b32 s86, s86, 0
    v_and_b32 v3, 31, v1
    s_lshl_b32 s46, s43, 5
    v_add_u32 v213, s46, v3
    v_lshlrev_b32 v208, 2, v213
    v_xor_b32 v209, 128, v208
    v_lshlrev_b32 v212, 1, v213
    s_lshl_b32 s46, s30, 8
    s_add_u32 s46, s46, {GG}
    buffer_load_dword v208, v208, s[36:39], s46 offen
    buffer_load_dword v209, v209, s[36:39], s46 offen
    buffer_load_ushort v212, v212, s[24:27], s45 offen""")
    tr_addr(a, 26, 1, 3, 44, 43)
    dma_voff(a, 30, 1, 3, 896, 47)

def gemm_chain(a, fill=None):
    ACC, TR, DIR = 32, 96, 112
    def mid():
        gelu_out(a)
        a("K2_G2:")
        stamp(a, 2)
        a("s_cmp_ge_u32 s34, 28\ns_cbranch_scc1 K2_END")
        red_addr(a, 8, 1, 16, 0, RD2*2048, 47)
    def scale():
        stamp(a, 4)
        a("v_sub_f32 v208, 1.0, v208\nv_sub_f32 v210, 1.0, v209\ns_nop 7\ns_nop 1")
        for j in range(4):
            for r in range(0, 16, 2):
                a(f"v_pk_mul_f32 {R(ACC+16*j+r,2)}, {R(ACC+16*j+r,2)}, {R(210 if j & 1 else 208,2)} op_sel_hi:[1,0]")
        a(f"""v_lshlrev_b32 v212, 16, v212
        v_mul_f32 v212, v212, v208
        v_mul_u32_u24 v24, 896, v213
        v_lshrrev_b32 v3, 5, v1
        v_lshl_add_u32 v24, v3, 4, v24
        s_mul_i32 s46, s30, {64*896}
        s_lshl_b32 s47, s31, 7
        s_add_u32 s46, s46, s47
        s_lshl_b32 s47, s42, 6
        s_add_u32 s46, s46, s47""")
        for r in range(0, 16, 2):
            a(f"v_pk_add_f32 {R(ACC+r,2)}, {R(ACC+r,2)}, v[212:213] op_sel_hi:[1,0]")
    l0, l1, l2, tp = opt('l0', 12), opt('l1', 6), opt('l2', 6), opt('tp', 3)
    steps = [dict(dma=(20, 4, 40, 16*3584), dir=(36, 6, 41, 2048), tra=12, a_is_tr=True, la=max(l1, l0 - i//tp)) for i in range(32)]
    steps += [dict(dma=(84, 214, 32, 16*4096), dir=(36, 28, 33, 2048), tra=26, a_is_tr=False, dflag='sc1', la=l2) for i in range(28)]
    steps += [dict(dma=(76, 30, 48, (12 if i & 1 else 16)*896), dir=(36, 6, 49, 2048), tra=12, a_is_tr=True, dflag='sc1', la=l2) for i in range(8)]
    steps[32]['first'] = True; steps[32]['before'] = mid
    steps[32]['gate'] = lambda: (poll(a, 36, 52, 28, 128, 1, 3, 25, opt('nap', 2)), stamp(a, 3))
    steps[60]['before'] = scale
    steps[60-l2]['peek'] = lambda: poll(a, 36, 53, 8, 512, 1, 216, 217, part=1)
    steps[60-l2]['check'] = lambda: (poll(a, 36, 53, 8, 512, 1, 216, 217, opt('nap', 2), part=2), stamp(a, 5))
    gemm_steps(a, steps, RD2, ACC, TR, DIR, 44, lambda: gemm2_setup(a))
    stamp(a, 6)
    a("s_nop 7\ns_nop 4")
    red_write(a, ACC, 8)
    lds_arrive(a, 14, 12, 25); lds_wait(a, 14, 12, 25)
    red_read(a, ACC, 9)
    for r in range(8): a(f"v_cvt_pk_bf16_f32 v{48+r}, v{ACC+2*r}, v{ACC+2*r+1}")
    a("s_nop 1")
    for p in range(2):
        a(f"v_permlane32_swap_b32 v{48+4*p}, v{50+4*p}\nv_permlane32_swap_b32 v{49+4*p}, v{51+4*p}")
    for p in range(2):
        a(f"buffer_store_dwordx4 {R(48+4*p,4)}, v24, s[80:83], s46 offen offset:{32*p}")

def k2(a):
    head(a, "k2_kernel")
    a("s_cmp_ge_u32 s2, 256\ns_cbranch_scc1 K2_END")
    for k in range(7): stamp(a, k)
    a(f"""s_load_dwordx2 s[14:15], s[0:1], 104
    s_load_dwordx8 s[4:11], s[0:1], 48
    s_load_dwordx2 s[12:13], s[0:1], 32
    s_load_dwordx2 s[28:29], s[0:1], 88
    v_lshrrev_b32 v2, 6, v0
    v_and_b32 v1, 63, v0
    s_mov_b32 s50, {hx(2.0**60)}
    v_readfirstlane_b32 s16, v2
    v_mov_b32 v14, {K2_CNT}
    v_mov_b32 v15, 0
    v_lshlrev_b32 v2, 4, v1
    ds_write2_b32 v14, v15, v15 offset0:0 offset1:1
    ds_write2_b32 v14, v15, v15 offset0:2 offset1:3
    s_waitcnt lgkmcnt(0)
    s_barrier""")
    srd(a, 36, 14, WS_END)
    a("s_cmp_ge_u32 s16, 4\ns_cbranch_scc1 K2_GEMM")
    attention(a)
    a(f"""K2_GEMM:
    s_setprio {opt('prio', 2)}
    s_sub_u32 s16, s16, 4
    s_lshr_b32 s42, s16, 1
    s_and_b32 s43, s16, 1
    s_mul_i32 s44, s16, {RD2*2048}
    s_lshl_b32 s46, s43, 10
    v_add_u32 v6, s46, v2
    v_xor_b32 v7, 1024, v6""")
    tr_addr(a, 12, 1, 3, 44, 42)
    srd(a, 76, 12, 448*896); srd(a, 80, 28, 2048*896)
    gemm1(a)
    gemm_chain(a)
    a("s_add_u32 s16, s16, 4\nK2_FIN:")
    stamp_out(a, 1, 7, 16, 36)
    a("K2_END:\ns_endpgm\nK2_PF:")
    prefetch_w2(a)
    lds_arrive(a, 14, 4, 25)
    gemm2_setup(a)
    a("s_branch K2_G2")
```

```python
import struct
NAME = "gated_mix__grouped_kv_mqa__mixer_token_mlp__prompt"
QF, KV, HT, GG, UU, OF, WS_END = 0, 0x200000, 0x240000, 0x400000, 0x410000, 0x600000, 0x800000
CU, CO = 0x5A0000, 0x5A8000
ST = 0x900000

def f2u(x): return struct.unpack('<I', struct.pack('<f', x))[0]
def hx(x): return "0x%x" % f2u(x)

class Asm:
    def __init__(s): s.l = []
    def __call__(s, t):
        for x in t.strip().split("\n"):
            x = x.strip()
            if x: s.l.append(x if x.endswith(":") else "    " + x)
    def text(s): return "\n".join(s.l) + "\n"

def R(b, n): return "v[%d:%d]" % (b, b + n - 1)
def srd(a, d, b, nbytes):
    a(f"s_mov_b32 s{d}, s{b}\ns_mov_b32 s{d+1}, s{b+1}\ns_mov_b32 s{d+2}, {nbytes}\ns_mov_b32 s{d+3}, 0x20000")
def S4(d): return "s[%d:%d]" % (d, d + 3)
def mfma(a, d, x, y, c):
    a(f"v_mfma_f32_32x32x16_bf16 {R(d,16)}, {R(x,4)}, {R(y,4)}, {'0' if c is None else R(c,16)}")
def head(a, name):
    a(f".globl {name}\n.p2align 8\n.type {name},@function\n{name}:")
def desc(name, vgpr):
    return (f".amdhsa_kernel {name}\n  .amdhsa_next_free_vgpr {vgpr}\n  .amdhsa_next_free_sgpr 96\n"
            f"  .amdhsa_accum_offset {min(256,(vgpr+3)//4*4)}\n  .amdhsa_group_segment_fixed_size 0\n"
            "  .amdhsa_kernarg_size 112\n  .amdhsa_user_sgpr_count 2\n"
            "  .amdhsa_user_sgpr_kernarg_segment_ptr 1\n  .amdhsa_system_sgpr_workgroup_id_x 1\n"
            ".end_amdhsa_kernel\n")

import sys
OPT = dict(x.split('=') for x in sys.argv if '=' in x)
def opt(k, d=0): return int(OPT.get(k, d))
DIAG = False
def stamp(a, k):
    if DIAG: a(f"s_memrealtime s[{60+2*k}:{61+2*k}]")
def stamp_out(a, kern, n, wavereg, ws):
    if not DIAG: return
    a(f"s_memrealtime s[{60+2*n}:{61+2*n}]\ns_waitcnt lgkmcnt(0)")
    a(f"s_lshl_b32 s90, s2, 3\ns_add_u32 s90, s90, s{wavereg}\ns_lshl_b32 s90, s90, 5")
    a(f"s_add_u32 s90, s90, {ST + kern*0x20000}\ns_mov_b32 s{ws+2}, 0x1000000\ns_mov_b64 exec, 1\nv_mov_b32 v1, 0")
    for k in range(n + 1):
        a(f"v_mov_b32 v0, s{60+2*k}\nbuffer_store_dword v0, v1, {S4(ws)}, s90 offen offset:{4*k}")

def tr_addr(a, dst, lane, tmp, base_s, sel_s):
    a(f"""v_lshrrev_b32 v{tmp}, 5, v{lane}
    v_lshlrev_b32 v{dst}, 9, v{tmp}
    v_bfe_u32 v{tmp}, v{lane}, 2, 2
    v_lshl_add_u32 v{dst}, v{tmp}, 7, v{dst}
    v_lshrrev_b32 v{tmp}, 1, v{tmp}
    v_xor_b32 v{tmp}, s{sel_s}, v{tmp}
    v_lshl_add_u32 v{dst}, v{tmp}, 6, v{dst}
    v_bfe_u32 v{tmp}, v{lane}, 4, 1
    v_lshl_add_u32 v{dst}, v{tmp}, 5, v{dst}
    v_and_b32 v{tmp}, 3, v{lane}
    v_lshl_add_u32 v{dst}, v{tmp}, 3, v{dst}
    v_add_u32 v{dst}, s{base_s}, v{dst}
    v_xor_b32 v{dst+1}, 64, v{dst}""")

def dma_voff(a, dst, lane, tmp, stride, sreg):
    a(f"""v_lshrrev_b32 v{tmp}, 3, v{lane}
    s_mov_b32 s{sreg}, {stride}
    v_mul_lo_u32 v{dst}, v{tmp}, s{sreg}
    v_lshlrev_b32 v{tmp}, 1, v{tmp}
    v_and_b32 v{tmp}, 4, v{tmp}
    v_xor_b32 v{tmp}, v{tmp}, v{lane}
    v_and_b32 v{tmp}, 7, v{tmp}
    v_lshl_add_u32 v{dst}, v{tmp}, 4, v{dst}
    v_add_u32 v{dst+1}, {8*stride-1024}, v{dst}""")

def gemm_steps(a, steps, RD, ACC, TR, DIR, ring_s, pre=None, only=None):
    n = len(steps); ops = []; done = [0]; nd = [0, 0]
    def need(tag):
        k = max(i for i, t in enumerate(ops) if t == tag) + 1
        if k > done[0]:
            a(f"s_waitcnt vmcnt({len(ops)-k})"); done[0] = k
    def wrap(i, r, k):
        if steps[i].get('rot'):
            b = steps[i]['rot'][k]
            a(f"s_cmp_eq_u32 s{r}, s{b+1}\ns_cselect_b32 s{r}, s{b}, s{r}")
    def ld_dir(i, b):
        d2, v2, s2, inc2 = steps[i]['dir']
        a(f"buffer_load_dwordx4 {R(DIR+8*(i%RD)+4*b,4)}, v{v2+b}, {S4(d2)}, s{s2} offen {steps[i].get('dflag','')}")
        ops.append(('dir', i))
        if b: a(f"s_add_u32 s{s2}, s{s2}, {inc2}"); wrap(i, s2, 1)
    def issue(i, act=True):
        st = steps[i]; sd, vo, so, inc = st['dma']; w = nd[0] == i
        if w: a(f"s_add_u32 m0, s{ring_s}, {(i%RD)*2048}")
        if act: ld_dir(i, 0)
        else: a("s_nop 0")
        if w: a(f"buffer_load_dwordx4 v{vo}, {S4(sd)}, s{so} offen lds"); ops.append(('dma', i))
        if act: ld_dir(i, 1); nd[1] = i + 1
        if w:
            a(f"buffer_load_dwordx4 v{vo+1}, {S4(sd)}, s{so} offen offset:1024 lds"); ops.append(('dma', i))
            a(f"s_add_u32 s{so}, s{so}, {inc}"); wrap(i, so, 0); nd[0] = i + 1
        if act and 'peek' in st: st['peek'](); ops.append(('peek', i))
    def upto(k):
        while nd[1] <= min(k, n-1) and not steps[nd[1]].get('first'): issue(nd[1])
    def trread(i):
        need(('dma', i))
        sl = i % RD; t = TR + 8*(i & 1); ad = steps[i]['tra']
        for blk in range(2):
            for hf in range(2):
                a(f"ds_read_b64_tr_b16 {R(t+4*blk+2*hf,2)}, v{ad+blk} offset:{sl*2048+hf*1024}")
    def fill(k):
        for _ in range(k): issue(nd[0], False)
    if only:
        nd[0] = only[0]; fill(only[1]); return
    upto(steps[0]['la'] - 1)
    if pre: pre()
    for i in range(n):
        st = steps[i]; sl = i % RD
        first = i == 0 or st.get('first')
        nxt = i + 1 < n and not steps[i+1].get('first')
        if 'before' in st: st['before'](fill)
        if st.get('first'):
            fill(i + RD - nd[0])
            st['gate'](); done[0] = len(ops)
            issue(i); upto(i + st['la'] - 1)
        if first: trread(i)
        if nxt: trread(i + 1)
        need(('dir', i))
        a(f"s_waitcnt lgkmcnt({4 if nxt else 0})")
        t = TR + 8*(i & 1); d = DIR + 8*sl
        A_, B_ = (t, d) if st['a_is_tr'] else (d, t)
        for j in range(4):
            mfma(a, ACC+16*j, A_+4*(j >> 1), B_+4*(j & 1), None if first else ACC+16*j)
        if 'check' in st: need(('peek', i)); st['check']()
        upto(i + st['la'])

LBL = [0]
def poll(a, ws, off_s, nflag, stride, lane, va, vt, nap=2, part=0):
    LBL[0] += 1; L = f"PL{LBL[0]}"
    if part == 2: a(f"v_cmp_eq_u32 vcc, 0, v{vt}\ns_cbranch_vccz {L}D")
    else: a(f"""v_min_u32 v{vt}, {nflag-1}, v{lane}
    v_lshrrev_b32 v{va}, 2, v{vt}
    v_mul_u32_u24 v{va}, {stride}, v{va}
    v_and_b32 v{vt}, 3, v{vt}
    v_lshl_add_u32 v{va}, v{vt}, 2, v{va}""")
    if part == 1:
        a(f"buffer_load_dword v{vt}, v{va}, {S4(ws)}, s{off_s} offen sc1"); return
    a(f"""s_mov_b32 s55, 0x40000
    {L}:
    buffer_load_dword v{vt}, v{va}, {S4(ws)}, s{off_s} offen sc1
    s_waitcnt vmcnt(0)
    v_cmp_eq_u32 vcc, 0, v{vt}
    s_cbranch_vccz {L}D
    s_sleep {nap}
    s_sub_u32 s55, s55, 1
    s_cbranch_scc0 {L}
    {L}D:""")
def signal(a, ws, off_s, vz, vt, cnt=0):
    a(f"""v_mov_b32 v{vt}, 1
    s_waitcnt vmcnt({cnt})
    s_mov_b64 exec, 1
    buffer_store_dword v{vt}, v{vz}, {S4(ws)}, s{off_s} offen sc1
    s_mov_b64 exec, -1""")
def lds_arrive(a, va, off, vt):
    a(f"v_mov_b32 v{vt}, 1\ns_waitcnt lgkmcnt(0)\ns_mov_b64 exec, 1\nds_add_u32 v{va}, v{vt} offset:{off}\ns_mov_b64 exec, -1")
def lds_wait(a, va, off, vt, target=4):
    LBL[0] += 1; L = f"LW{LBL[0]}"
    a(f"""{L}:
    ds_read_b32 v{vt}, v{va} offset:{off}
    s_waitcnt lgkmcnt(0)
    v_readfirstlane_b32 s54, v{vt}
    s_cmp_lt_u32 s54, {target}
    s_cbranch_scc1 {L}""")

def red_write(a, ACC, vaddr):
    for j in range(1, 4):
        for g in range(4):
            a(f"ds_write_b128 v{vaddr}, {R(ACC+16*j+4*g,4)} offset:{j*4096+g*1024}")
def red_read(a, ACC, vaddr3):
    for j in range(1, 4):
        for g in range(4):
            a(f"ds_read_b128 {R(ACC+16*j+4*g,4)}, v{vaddr3+j-1} offset:{j*4096+g*1024}")
    for j in range(1, 4):
        a(f"s_waitcnt lgkmcnt({4*(3-j)})")
        for r in range(0, 16, 2):
            a(f"v_pk_add_f32 {R(ACC+r,2)}, {R(ACC+r,2)}, {R(ACC+16*j+r,2)}")
def red_addr(a, dst, lane, w_s, base, stride, tmp_s):
    for j in range(4):
        a(f"s_xor_b32 s{tmp_s}, s{w_s}, {j}\ns_mul_i32 s{tmp_s}, s{tmp_s}, {stride}\ns_add_u32 s{tmp_s}, s{tmp_s}, {base}")
        a(f"v_lshl_add_u32 v{dst+j}, v{lane}, 4, s{tmp_s}")
def rotate(a, r, b, rot_s, inc, n, t):
    a(f"s_mov_b32 s{b}, s{r}\ns_add_u32 s{b+1}, s{r}, {inc*n}\ns_mul_i32 s{t}, s{rot_s}, {inc}\ns_add_u32 s{r}, s{r}, s{t}")
```

```python
from gen_common import *
import math
XL, WQL, WKL, K1_LDS = 0, 29184, 129536, 155648

def proj_loop(a, stride, swap):
    D = 4
    def rd(ks):
        b = 32 + 8*(ks % D); base = 11 + ks // 14; o = (ks % 14)*16*stride
        a(f"ds_read_b128 {R(b,4)}, v10 offset:{32*ks}")
        a(f"ds_read_b64_tr_b16 {R(b+4,2)}, v{base} offset:{o}")
        a(f"ds_read_b64_tr_b16 {R(b+6,2)}, v{base} offset:{o+4*stride}")
    for ks in range(D - 1): rd(ks)
    for ks in range(28):
        if ks + D - 1 < 28: rd(ks + D - 1)
        a(f"s_waitcnt lgkmcnt({3*min(D-1, 27-ks)})")
        b = 32 + 8*(ks % D)
        x, y = (b, b+4) if swap else (b+4, b)
        mfma(a, 16, x, y, None if ks == 0 else 16)
    a("s_nop 7\ns_nop 4")

def w_addr(a, stride, base_expr_s):
    a(f"""v_lshrrev_b32 v3, 5, v1
    v_lshlrev_b32 v3, 3, v3
    v_bfe_u32 v4, v1, 2, 2
    v_add_u32 v3, v3, v4
    v_mul_u32_u24 v11, {stride}, v3
    v_bfe_u32 v4, v1, 4, 1
    v_lshl_add_u32 v11, v4, 5, v11
    v_and_b32 v4, 3, v1
    v_lshl_add_u32 v11, v4, 3, v11
    v_add_u32 v11, s{base_expr_s}, v11
    v_add_u32 v12, {14*16*stride}, v11""")

def pack_store(a, soff):
    for r in range(8): a(f"v_cvt_pk_bf16_f32 v{32+r}, v{16+2*r}, v{17+2*r}")

def rowsum16(a, v):
    for sh in (8, 4, 2, 1):
        a(f"s_nop 1\nv_add_f32_dpp v{v}, v{v}, v{v} row_ror:{sh} row_mask:0xf bank_mask:0xf")

def k1(a):
    head(a, "k1_kernel")
    a("s_cmp_ge_u32 s2, 256\ns_cbranch_scc1 K1_END")
    stamp(a, 0)
    a("""s_load_dwordx4 s[4:7], s[0:1], 0
    s_load_dwordx4 s[8:11], s[0:1], 16
    s_load_dwordx2 s[12:13], s[0:1], 80
    s_load_dwordx2 s[14:15], s[0:1], 104
    s_load_dwordx2 s[48:49], s[0:1], 48
    s_load_dwordx2 s[76:77], s[0:1], 32
    v_lshrrev_b32 v2, 6, v0
    v_and_b32 v1, 63, v0
    s_and_b32 s17, s2, 7
    v_readfirstlane_b32 s16, v2
    s_lshl_b32 s17, s17, 3
    s_lshr_b32 s18, s2, 5
    s_add_u32 s17, s17, s18
    s_bfe_u32 s18, s2, 0x20003
    v_lshlrev_b32 v2, 4, v1
    s_lshl_b32 s40, s17, 5
    s_lshl_b32 s41, s16, 2
    s_add_u32 s40, s40, s41
    s_mul_i32 s40, s40, 896
    s_mul_i32 s41, s41, 912
    v_mul_u32_u24 v3, 4682, v0
    v_lshrrev_b32 v3, 16, v3
    v_mul_u32_u24 v4, 14, v3
    v_sub_u32 v4, v0, v4
    v_mul_u32_u24 v5, 896, v3
    v_lshl_add_u32 v5, v4, 4, v5
    s_mul_i32 s42, s18, 224
    s_lshl_b32 s43, s16, 10
    s_waitcnt lgkmcnt(0)""")
    srd(a, 20, 4, 2048*896); srd(a, 24, 6, 448*896); srd(a, 36, 14, WS_END)
    a(f"""s_cmp_lg_u32 s16, 7
    s_cbranch_scc1 K1_NZ
    s_lshl_b32 s44, s2, 7
    s_add_u32 s44, s44, {CU}
    v_mov_b32 v6, 0
    v_lshlrev_b32 v7, 2, v1
    s_mov_b64 exec, 15
    buffer_store_dword v6, v7, s[36:39], s44 offen
    s_add_u32 s44, s44, {CO-CU}
    buffer_store_dword v6, v7, s[36:39], s44 offen
    K1_NZ:
    s_mov_b32 exec_lo, -1
    s_mov_b32 exec_hi, 0xffffff""")
    for r in range(4):
        a(f"s_add_u32 m0, s41, {XL+r*912}\ns_add_u32 s44, s40, {r*896}\nbuffer_load_dwordx4 v2, s[20:23], s44 offen lds")
    a("s_mov_b32 exec_hi, -1")
    a("s_cmp_lt_u32 s16, 4\ns_cbranch_scc1 K1_WQ\ns_cmp_lt_u32 s18, 2\ns_cbranch_scc1 K1_NOLN0")
    srd(a, 32, 12, 896)
    a("""s_sub_u32 s45, s16, 4
    s_lshl_b32 s45, s45, 2
    v_lshrrev_b32 v6, 4, v1
    v_add_u32 v6, s45, v6
    v_and_b32 v7, 15, v1
    v_lshlrev_b32 v7, 3, v7
    v_mul_u32_u24 v8, 896, v6
    v_add_u32 v8, v8, v7
    s_lshl_b32 s46, s17, 1
    s_add_u32 s46, s46, s18
    s_sub_u32 s46, s46, 2
    s_mul_i32 s47, s46, 14336""")
    for i in range(7): a(f"buffer_load_dwordx2 {R(16+2*i,2)}, v8, s[20:23], s47 offen offset:{128*i}")
    for i in range(7): a(f"buffer_load_dwordx2 {R(64+2*i,2)}, v7, s[32:35], 0 offen offset:{128*i}")
    a("K1_NOLN0:\ns_cmp_eq_u32 s16, 7\ns_cbranch_scc1 K1_W7")
    a("K1_WQ:")
    if opt('qr', 1):
        a(f"s_lshr_b32 s56, s2, 5\ns_mul_i32 s56, s56, 7\ns_lshr_b32 s56, s56, 2\ns_mul_i32 s56, s56, 7168\ns_add_u32 s43, s43, {WQL}")
        for i in range(14):
            a("s_add_u32 m0, s43, s56\ns_lshl2_add_u32 s44, s56, s42\nbuffer_load_dwordx4 v5, s[24:27], s44 offen lds")
            if i < 13: a("s_add_u32 s56, s56, 7168\ns_cmp_eq_u32 s56, 100352\ns_cselect_b32 s56, 0, s56")
    for i in range(0 if opt('qr', 1) else 14):
        a(f"s_add_u32 m0, s43, {WQL+i*7168}\ns_add_u32 s44, s42, {i*28672}\nbuffer_load_dwordx4 v5, s[24:27], s44 offen lds")
    a("s_cmp_lt_u32 s16, 4\ns_cbranch_scc1 K1_BAR\ns_cmp_lt_u32 s18, 2\ns_cbranch_scc1 K1_BAR\ns_branch K1_LN0")
    a("K1_W7:\ns_cmp_ge_u32 s18, 2\ns_cbranch_scc1 K1_LN0")
    a("s_cmp_eq_u32 s18, 0\ns_cselect_b32 s28, s8, s10\ns_cselect_b32 s29, s9, s11\ns_mov_b32 s30, 25088\ns_mov_b32 s31, 0x20000")
    for i in range(25):
        if i % 4 == 0: a(f"s_mov_b32 m0, {WKL+i*1024}\ns_mov_b32 s44, {i*1024}")
        a(f"buffer_load_dwordx4 v2, s[28:31], s44 offen offset:{(i%4)*1024} lds")
    a("s_branch K1_BAR")
    a("K1_LN0:")
    a("K1_LN1:\ns_mov_b64 exec, -1\ns_waitcnt vmcnt(14)\ns_cmp_lg_u32 s16, 7\ns_cbranch_scc1 K1_LN\ns_waitcnt vmcnt(0)")
    a("K1_LN:")
    a("v_mov_b32 v62, 0\nv_mov_b32 v60, 0\nv_mov_b32 v61, 0")
    for i in range(14):
        a(f"v_lshlrev_b32 v{32+2*i}, 16, v{16+i}\nv_and_b32 v{33+2*i}, 0xffff0000, v{16+i}")
        a(f"v_dot2_f32_bf16 v62, v{16+i}, v{64+i}, v62")
        a(f"v_pk_add_f32 v[60:61], v[60:61], {R(32+2*i,2)}")
    a("v_add_f32 v60, v60, v61")
    rowsum16(a, 60); rowsum16(a, 62)
    a(f"v_mul_f32 v60, {hx(1/448)}, v60\nv_mov_b32 v14, 0\nv_mov_b32 v15, 0")
    for i in range(14):
        a(f"v_pk_add_f32 {R(32+2*i,2)}, {R(32+2*i,2)}, v[60:61] op_sel_hi:[1,0] neg_lo:[0,1] neg_hi:[0,1]")
        a(f"v_pk_fma_f32 v[14:15], {R(32+2*i,2)}, {R(32+2*i,2)}, v[14:15]")
    a("v_add_f32 v14, v14, v15")
    rowsum16(a, 14)
    a(f"""v_mov_b32 v15, {hx(1e-5)}
    v_fmac_f32 v15, {hx(1/448)}, v14
    v_rsq_f32 v60, v15
    v_mul_f32 v62, {hx(-math.log2(math.e))}, v62
    v_exp_f32 v62, v62
    v_mul_u32_u24 v9, 912, v6
    v_add_f32 v62, 1.0, v62
    v_rcp_f32 v62, v62
    v_add_u32 v9, v9, v7
    v_add_u32 v9, {WKL}, v9""")
    for i in range(14):
        a(f"v_pk_mul_f32 {R(32+2*i,2)}, {R(32+2*i,2)}, v[60:61] op_sel_hi:[1,0]")
        a(f"v_cvt_pk_bf16_f32 v{16+i}, v{32+2*i}, v{33+2*i}")
        if i & 1: a(f"ds_write_b64 v9, {R(15+i,2)} offset:{128*(i//2)}")
    a(f"""s_cbranch_execz K1_BAR1
    v_lshlrev_b32 v6, 2, v6
    s_lshl_b32 s47, s46, 6
    s_add_u32 s47, s47, {GG}
    s_mov_b32 exec_lo, 0x10001
    s_mov_b32 exec_hi, 0x10001
    buffer_store_dword v62, v6, s[36:39], s47 offen
    s_branch K1_BAR1""")
    a("K1_BAR:")
    a("""v_and_b32 v3, 31, v1
    v_mul_u32_u24 v10, 912, v3
    v_lshrrev_b32 v3, 5, v1
    v_lshl_add_u32 v10, v3, 4, v10""")
    def pf():
        if opt('nr'):
            nr = opt('nr')
            a(f"""s_lshr_b32 s52, s2, 6
            s_lshl_b32 s52, s52, 9
            s_and_b32 s53, s2, 63
            s_mul_i32 s53, s53, {nr}
            s_add_u32 s52, s52, s53
            s_mul_i32 s52, s52, 3584
            s_mov_b32 s50, {2048*3584}
            s_mov_b32 s51, 0x20000
            s_mov_b32 s53, {28*nr}
            v_lshlrev_b32 v13, 7, v0
            v_cmp_gt_u32 s[54:55], s53, v0
            s_and_saveexec_b64 s[54:55], s[54:55]
            buffer_load_dword v13, v13, s[48:51], s52 offen
            s_mov_b64 exec, -1
            s_cmp_lg_u32 s16, 5
            s_cbranch_scc1 K1_PFD
            s_mov_b32 s78, {448*896}
            s_mov_b32 s79, 0x20000
            s_mul_i32 s52, s2, {13*128}
            v_lshlrev_b32 v14, 7, v1
            s_mov_b64 exec, 0x1fff
            buffer_load_dword v14, v14, s[76:79], s52 offen
            s_mov_b64 exec, -1
            K1_PFD:""")
            return
        if opt('pfc'):
            a(f"""s_mul_i32 s52, s2, 28672
            s_mov_b32 s50, {2048*3584}
            s_mov_b32 s51, 0x20000
            v_lshlrev_b32 v13, {opt('pfc')}, v0
            v_cmp_gt_u32 s[54:55], {28672 >> opt('pfc') >> 5}, v14
            s_and_saveexec_b64 s[54:55], s[54:55]
            buffer_load_dword v13, v13, s[48:51], s52 offen
            s_mov_b64 exec, -1""")
            return
        a(f"""s_mov_b32 s50, {2048*3584}
        s_mov_b32 s51, 0x20000
        s_add_u32 s52, s2, {opt('xs')}
        s_and_b32 s52, s52, 7
        s_mul_i32 s52, s52, 7
        s_lshr_b32 s52, s52, 1
        s_lshl_b32 s52, s52, 7
        s_lshr_b32 s53, s2, 3
        s_mul_i32 s53, s53, {64*3584}
        s_add_u32 s52, s52, s53
        v_lshrrev_b32 v13, 3, v0
        v_mul_u32_u24 v13, 3584, v13
        v_and_b32 v14, 7, v0
        v_lshl_add_u32 v13, v14, 6, v13
        s_bfe_u32 s53, s2, 0x30003
        s_cmp_lt_u32 s53, {opt('pfh', 8)}
        s_cselect_b32 s50, s50, 0
        buffer_load_dword v13, v13, s[48:51], s52 offen""")
    if opt('wu', 1):
        a("s_mov_b64 exec, 0\ns_cmp_eq_u32 s16, 0\ns_cbranch_scc1 K1_GO\ns_cmp_lt_u32 s18, 2\ns_cbranch_scc1 K1_WKV")
        a("s_cmp_eq_u32 s16, 1\ns_cbranch_scc1 K1_HT")
        if opt('wu', 1) & 2: a("s_cmp_eq_u32 s16, 2\ns_cbranch_scc1 K1_LN")
        a("K1_WKV:\ns_cmp_eq_u32 s16, 1\ns_cbranch_scc1 K1_KV")
    a("K1_BAR1:\ns_mov_b64 exec, -1\nv_lshrrev_b32 v14, 5, v0\nv_cmp_lt_u32 vcc, 31, v1")
    stamp(a, 1)
    if opt('pf1') == 1: pf()
    a(f"s_waitcnt vmcnt({1 if opt('pf1') == 1 else 0}) lgkmcnt(0)\ns_barrier")
    if opt('pf1') == 2: pf()
    stamp(a, 2)
    a("K1_GO:")
    a("s_cmp_ge_u32 s16, 4\ns_cbranch_scc1 K1_EXTRA")
    a(f"s_mul_i32 s44, s16, 56\ns_add_u32 s44, s44, {WQL}")
    w_addr(a, 224, 44)
    proj_loop(a, 224, False)
    a(f"s_mov_b32 s44, {hx(math.log2(math.e)/math.sqrt(28))}")
    for r in range(16): a(f"v_mul_f32 v{16+r}, s44, v{16+r}")
    pack_store(a, 0)
    a(f"""v_cndmask_b32 v38, v38, 0, vcc
    v_cndmask_b32 v39, v39, 0, vcc
    s_lshl_b32 s44, s17, 2
    s_add_u32 s44, s44, s18
    s_lshl_b32 s44, s44, 2
    s_add_u32 s44, s44, s16
    s_lshl_b32 s44, s44, 11
    s_branch K1_ST2""")
    a("K1_EXTRA:\ns_cmp_ge_u32 s18, 2\ns_cbranch_scc1 K1_HT\ns_cmp_lg_u32 s16, 4\ns_cbranch_scc1 K1_FIN")
    a(f"K1_KV:\ns_mov_b32 s44, {WKL}")
    w_addr(a, 56, 44)
    a("s_cmp_eq_u32 s18, 1\ns_cbranch_scc1 K1_V")
    proj_loop(a, 56, False)
    pack_store(a, 0)
    a(f"""v_mov_b32 v3, 0x3f803f80
    v_mov_b32 v4, 0x3f80
    v_cndmask_b32 v38, v38, v3, vcc
    v_cndmask_b32 v39, v39, v4, vcc
    s_lshl_b32 s44, s17, 12
    s_add_u32 s44, s44, {KV}
    s_branch K1_ST2""")
    a("K1_V:")
    proj_loop(a, 56, True)
    pack_store(a, 0)
    a("""v_and_b32 v4, 31, v1
    v_cmp_eq_u32 vcc, 28, v4
    v_mov_b32 v3, 0x3f803f80
    s_nop 0
    v_cndmask_b32 v3, 0, v3, vcc
    v_cmp_lt_u32 vcc, 27, v4
    s_nop 1""")
    for r in range(8): a(f"v_cndmask_b32 v{32+r}, v{32+r}, v3, vcc")
    a(f"s_lshl_b32 s44, s17, 12\ns_add_u32 s44, s44, {KV+2048}")
    a("""K1_ST2:
    buffer_store_dwordx4 v[32:35], v2, s[36:39], s44 offen
    buffer_store_dwordx4 v[36:39], v2, s[36:39], s44 offen offset:1024
    s_branch K1_FIN""")
    a(f"""K1_HT:
    v_lshrrev_b32 v3, 5, v1
    v_lshlrev_b32 v3, 2, v3
    v_bfe_u32 v4, v1, 2, 2
    v_add_u32 v3, v3, v4
    v_mul_u32_u24 v11, 912, v3
    v_bfe_u32 v4, v1, 4, 1
    v_lshl_add_u32 v11, v4, 5, v11
    v_and_b32 v4, 3, v1
    v_lshl_add_u32 v11, v4, 3, v11
    s_sub_u32 s45, s16, 4
    s_lshl_b32 s44, s45, 6
    s_add_u32 s44, s44, {WKL}
    v_add_u32 v11, s44, v11
    s_lshl_b32 s46, s17, 1
    s_add_u32 s46, s46, s18
    s_sub_u32 s46, s46, 2
    s_lshl_b32 s46, s46, 11
    s_lshr_b32 s44, s45, 1
    s_lshl_b32 s44, s44, 18
    s_add_u32 s46, s46, s44
    s_and_b32 s44, s45, 1
    s_lshl_b32 s44, s44, 10
    s_add_u32 s46, s46, s44
    s_add_u32 s46, s46, {HT}""")
    for i in range(4):
        a(f"ds_read_b64_tr_b16 {R(32+4*i,2)}, v11 offset:{256*i}\nds_read_b64_tr_b16 {R(34+4*i,2)}, v11 offset:{256*i+8*912}")
    for i in range(4):
        if i == 3: a("s_cmp_ge_u32 s45, 2\ns_cbranch_scc1 K1_FIN")
        a(f"s_waitcnt lgkmcnt({6-2*i})\nbuffer_store_dwordx4 {R(32+4*i,4)}, v2, s[36:39], s46 offen\ns_add_u32 s46, s46, {2<<18}")
    a("K1_FIN:\ns_cbranch_execz K1_BAR1")
    stamp_out(a, 0, 3, 16, 36)
    a("K1_END:\ns_endpgm")
```

```python
from gen_common import *
import math
RD2 = opt('rd', 12)
K2_ATT = 4*RD2*2048
K2_CNT = K2_ATT + 49152
K2_LDS = K2_CNT + 64
Q, O, KVR, S, P = 16, 48, 112, 176, 208

def max16(a, dst, s, first):
    if first:
        a(f"v_max3_f32 v{dst}, v{s}, v{s+1}, v{s+2}")
        for r in range(3, 15, 2): a(f"v_max3_f32 v{dst}, v{dst}, v{s+r}, v{s+r+1}")
        a(f"v_max_f32 v{dst}, v{dst}, v{s+15}")
    else:
        for r in range(0, 16, 2): a(f"v_max3_f32 v{dst}, v{dst}, v{s+r}, v{s+r+1}")

def halfmax(a, v, t):
    a(f"v_mov_b32 v{t}, v{v}\ns_nop 1\nv_permlane32_swap_b32 v{v}, v{t}\nv_max_f32 v{v}, v{v}, v{t}")

def kv_load(a, slot, pr=False, rot=True):
    if pr: a("s_setprio 3")
    for i in range(4):
        a(f"buffer_load_dwordx4 {R(KVR+16*slot+4*i,4)}, v2, s[20:23], s41 offen offset:{1024*i}")
    a("s_add_u32 s41, s41, 4096")
    if rot and opt('rot') & 1: a("s_cmp_eq_u32 s41, s57\ns_cselect_b32 s41, s56, s41")
    if pr: a(f"s_setprio {opt('aprio')}")

def attention(a):
    a('s_setprio 3')
    a(f"""s_lshr_b32 s17, s2, 2
    s_and_b32 s18, s2, 3
    s_lshl_b32 s41, s16, 16
    s_add_u32 s41, s41, {KV}
    s_mov_b32 s40, {KV}
    v_and_b32 v3, 31, v1
    v_lshlrev_b32 v3, 2, v3
    s_lshl_b32 s42, s17, 7
    s_add_u32 s42, s42, {GG}
    v_cmp_lt_u32 s[46:47], 31, v1""")
    a("s_mov_b32 s20, s14\ns_mov_b32 s21, s15\ns_add_u32 s22, s41, 65536\ns_mov_b32 s23, 0x20000")
    if opt('rot') & 1: a("s_bfe_u32 s43, s2, 0x40003"); rotate(a, 41, 56, 43, 4096, 16, 43)
    for i in range(2): a(f"buffer_load_dwordx4 {R(P+4*i,4)}, v2, s[36:39], s40 offen offset:{1024*i}")
    for j in range(4):
        a(f"s_xor_b32 s43, s16, {j}\ns_lshl_b32 s44, s2, 2\ns_add_u32 s43, s43, s44\ns_lshl_b32 s43, s43, 11")
        for i in range(2): a(f"buffer_load_dwordx4 {R(Q+8*j+4*i,4)}, v2, s[36:39], s43 offen offset:{1024*i}")
    a("buffer_load_dword v4, v3, s[36:39], s42 offen")
    for t in range(3): kv_load(a, t)
    red_addr(a, 8, 1, 16, K2_ATT-4096, 12288, 43)
    for j in range(4):
        a(f"s_waitcnt vmcnt({13+2*(3-j)})")
        mfma(a, O+16*j, P, Q+8*j, None); mfma(a, O+16*j, P+4, Q+8*j+4, O+16*j)
    a("s_nop 6")
    for j in range(4):
        max16(a, 5, O+16*j, True); halfmax(a, 5, 6)
        a(f"v_cvt_pk_bf16_f32 v5, -v5, 0\nv_cndmask_b32 v{Q+8*j+6}, v{Q+8*j+6}, v5, s[46:47]")
    for r in range(64): a(f"v_mov_b32 v{O+r}, 0")
    stamp(a, 1)
    a(f"s_setprio {opt('aprio')}")
    a("s_waitcnt vmcnt(8)")
    mfma(a, S, KVR, Q, None); mfma(a, S, KVR+4, Q+4, S)
    a("s_mov_b32 s45, 0\ns_cmp_lg_u32 s45, 0\ns_nop 7\ns_nop 1\nK2_ALOOP:")
    for u in range(16):
        t, j = u >> 2, u & 3
        sc, sn = S + 16*(u & 1), S + 16*((u + 1) & 1)
        pc, pp = P + 8*(u & 1), P + 8*((u + 1) & 1)
        tp, jp = ((u - 1) >> 2) & 3, (u - 1) & 3
        tn, jn = ((u + 1) >> 2) & 3, (u + 1) & 3
        def ex(q, r0=0, r1=4):
            for r in range(r0, r1): a(f"v_exp_f32 v{sc+4*q+r}, v{sc+4*q+r}")
        def cv(q):
            for r in range(2): a(f"v_cvt_pk_bf16_f32 v{pc+2*q+r}, v{sc+4*q+2*r}, v{sc+4*q+2*r+1}")
        if j == 3: a("s_waitcnt vmcnt(8)")
        mfma(a, sn, KVR+16*tn, Q+8*jn, None)
        ex(0)
        mfma(a, sn, KVR+16*tn+4, Q+8*jn+4, sn)
        ex(1); cv(0)
        if u == 0: a("s_cbranch_scc0 K2_AENT")
        mfma(a, O+16*jp, KVR+16*tp+12, pp+4, O+16*jp)
        if u == 0: a("K2_AENT:")
        if j == 0: kv_load(a, tp, opt('kvp', 1))
        ex(2); cv(1); ex(3, 0, 2)
        mfma(a, O+16*j, KVR+16*t+8, pc, O+16*j)
        ex(3, 2, 4); cv(2); cv(3)
        if u == 15: a("s_add_u32 s45, s45, 1\ns_cmp_lt_u32 s45, 4\ns_cbranch_scc1 K2_ALOOP")
    mfma(a, O+48, KVR+48+12, P+12, O+48)
    stamp(a, 2)
    a('s_setprio 3')
    lds_wait(a, 14, 4, 5)
    a("s_nop 7")
    red_write(a, O, 8)
    lds_arrive(a, 14, 8, 5); lds_wait(a, 14, 8, 5)
    stamp(a, 3)
    red_read(a, O, 9)
    a(f"v_mov_b32 v6, v{O+12}\nv_mov_b32 v7, v{O+12}\nv_pk_mul_f32 v[12:13], {R(O,2)}, 0")
    for r in range(2, 16, 2): a(f"v_pk_fma_f32 v[12:13], {R(O+r,2)}, 0, v[12:13]")
    a(f"""v_permlane32_swap_b32 v6, v7
    v_cmp_nlt_f32 vcc, {hx(2.0**-30)}, v7
    v_cmp_ngt_f32 s[48:49], s50, v7
    v_cmp_u_f32 s[52:53], v12, v13
    s_or_b64 vcc, vcc, s[48:49]
    s_or_b64 vcc, vcc, s[52:53]
    {'s_branch' if opt('force') else 's_cbranch_vccnz'} K2_SLOW
    K2_NORM:
    v_rcp_f32 v7, v7
    s_lshr_b32 s43, s17, 1
    s_lshl_b32 s43, s43, 16
    v_mul_f32 v6, v7, v4
    s_lshl_b32 s44, s18, 2
    s_add_u32 s44, s44, s16
    s_lshl_b32 s44, s44, 12
    s_add_u32 s43, s43, s44
    s_and_b32 s44, s17, 1
    s_lshl_b32 s44, s44, 10
    s_add_u32 s43, s43, s44
    s_add_u32 s43, s43, {OF}""")
    for r in range(0, 16, 2):
        a(f"v_pk_mul_f32 {R(O+r,2)}, {R(O+r,2)}, v[6:7] op_sel_hi:[1,0]")
        a(f"v_cvt_pk_bf16_f32 v{P+r//2}, v{O+r}, v{O+r+1}")
    a(f"""v_cndmask_b32 v{P+6}, v{P+6}, 0, s[46:47]
    v_cndmask_b32 v{P+7}, v{P+7}, 0, s[46:47]
    buffer_store_dwordx4 {R(P,4)}, v2, s[36:39], s43 offen sc1
    buffer_store_dwordx4 {R(P+4,4)}, v2, s[36:39], s43 offen offset:2048 sc1
    s_lshl_b32 s43, s2, 5
    s_add_u32 s43, s43, s16
    s_lshl_b32 s43, s43, 2
    s_add_u32 s43, s43, {CO}""")
    signal(a, 36, 43, 15, 5)
    a("s_branch K2_FIN")
    a(f"K2_SLOW:\nv_cndmask_b32 v{Q+6}, v{Q+6}, 0, s[46:47]\nv_mov_b32 v5, 0xff800000\ns_mov_b32 s41, {KV}\ns_mov_b32 s22, {KV+64*4096}")
    a("K2_S1:")
    kv_load(a, 0, rot=False); a("s_waitcnt vmcnt(0)")
    mfma(a, S, KVR, Q, None); mfma(a, S, KVR+4, Q+4, S)
    a("s_nop 7\ns_nop 5"); max16(a, 5, S, False)
    a("s_cmp_lt_u32 s41, s22\ns_cbranch_scc1 K2_S1")
    halfmax(a, 5, 6)
    a(f"""v_and_b32 v6, 0xffff0000, v5
    v_sub_f32 v5, v5, v6
    v_and_b32 v7, 0xffff0000, v5
    v_sub_f32 v5, v5, v7
    v_cvt_pk_bf16_f32 v6, -v6, -v7
    v_cvt_pk_bf16_f32 v5, -v5, 0
    v_cndmask_b32 v{Q+6}, v{Q+6}, v6, s[46:47]
    v_cndmask_b32 v{Q+7}, v{Q+7}, v5, s[46:47]
    s_mov_b32 s41, {KV}""")
    for r in range(16): a(f"v_mov_b32 v{O+r}, 0")
    a("K2_S2:")
    kv_load(a, 0, rot=False); a("s_waitcnt vmcnt(0)")
    mfma(a, S, KVR, Q, None); mfma(a, S, KVR+4, Q+4, S)
    a("s_nop 7\ns_nop 5")
    for r in range(16): a(f"v_exp_f32 v{S+r}, v{S+r}")
    for r in range(8): a(f"v_cvt_pk_bf16_f32 v{P+r}, v{S+2*r}, v{S+2*r+1}")
    a("s_nop 1")
    mfma(a, O, KVR+8, P, O); mfma(a, O, KVR+12, P+4, O)
    a(f"""s_cmp_lt_u32 s41, s22
    s_cbranch_scc1 K2_S2
    s_nop 7
    s_nop 5
    v_mov_b32 v6, v{O+12}
    v_mov_b32 v7, v{O+12}
    s_nop 1
    v_permlane32_swap_b32 v6, v7
    s_nop 1
    s_branch K2_NORM""")

def gemm1(a):
    ACC, TR, DIR = 32, 96, 112
    a(f"""s_and_b32 s17, s2, 7
    s_mul_i32 s18, s17, 49
    s_add_u32 s19, s18, 50
    s_add_u32 s18, s18, 1
    s_lshr_b32 s18, s18, 1
    s_lshr_b32 s19, s19, 1
    s_lshr_b32 s17, s2, 3
    s_add_u32 s17, s17, s18
    s_cmp_ge_u32 s17, s19
    s_cbranch_scc1 K2_PF
    s_mul_i32 s18, s17, 9363
    s_lshr_b32 s18, s18, 16
    s_mul_i32 s19, s18, 7
    s_sub_u32 s19, s17, s19
    s_mul_i32 s40, s16, {512*3584}
    s_lshl_b32 s45, s18, 7
    s_add_u32 s40, s40, s45
    s_lshl_b32 s41, s19, 18
    s_lshl_b32 s46, s16, 16
    s_add_u32 s41, s41, s46
    s_add_u32 s41, s41, {HT}""")
    if opt('rot') & 2:
        a("s_lshl_b32 s46, s18, 1\ns_add_u32 s46, s46, s19\ns_and_b32 s46, s46, 7\ns_lshl_b32 s46, s46, 2")
        rotate(a, 40, 88, 46, 16*3584, 32, 47); rotate(a, 41, 91, 46, 2048, 32, 47)
    dma_voff(a, 4, 1, 3, 3584, 47)
    a("""v_lshrrev_b32 v3, 5, v1
    v_lshlrev_b32 v3, 3, v3
    s_lshl_b32 s46, s42, 6
    s_add_u32 s46, s46, s45""")
    srd(a, 20, 4, 2048*3584); srd(a, 24, 6, 3584)
    for g in range(4): a(f"buffer_load_dwordx2 {R(16+2*g,2)}, v3, s[24:27], s46 offen offset:{16*g}")
    red_addr(a, 8, 1, 16, K2_ATT-4096, 12288, 47)

F1, F2 = opt('f1'), opt('f2')
def gelu_out(a, fill):
    ACC = 32
    stamp(a, 1)
    a("s_nop 7\ns_nop 4")
    red_write(a, ACC, 8)
    lds_arrive(a, 14, 0, 25)
    fill(F1)
    lds_wait(a, 14, 0, 25)
    red_read(a, ACC, 9)
    lds_arrive(a, 14, 4, 25)
    c = 2*math.sqrt(2/math.pi)*math.log2(math.e)
    a(f"""s_mov_b32 s46, {hx(-c*0.044715)}
    v_mov_b32 v24, {hx(-c)}
    s_mul_i32 s56, s19, {112*2048}
    s_lshl_b32 s57, s18, 1
    s_add_u32 s57, s57, s42
    s_lshl_b32 s57, s57, 12
    s_add_u32 s56, s56, s57
    s_add_u32 s56, s56, {UU}
    s_mul_i32 s57, s19, 28
    s_add_u32 s57, s57, s18
    s_lshl_b32 s57, s57, 5
    s_add_u32 s57, s57, s16
    s_lshl_b32 s57, s57, 2
    s_add_u32 s57, s57, {CU}""")
    T = 48
    for r in range(16):
        if r & 1: a(f"v_and_b32 v{T+r}, 0xffff0000, v{16+r//2}")
        else: a(f"v_lshlrev_b32 v{T+r}, 16, v{16+r//2}")
    for r in range(0, 16, 2): a(f"v_pk_add_f32 {R(ACC+r,2)}, {R(ACC+r,2)}, {R(T+r,2)}")
    for r in range(0, 16, 2): a(f"v_pk_mul_f32 {R(T+r,2)}, {R(ACC+r,2)}, {R(ACC+r,2)}")
    for r in range(16): a(f"v_fma_f32 v{T+r}, v{T+r}, s46, v24")
    for r in range(0, 16, 2): a(f"v_pk_mul_f32 {R(T+r,2)}, {R(T+r,2)}, {R(ACC+r,2)}")
    for r in range(16): a(f"v_exp_f32 v{T+r}, v{T+r}")
    for r in range(16): a(f"v_add_f32 v{T+r}, 1.0, v{T+r}")
    for r in range(16): a(f"v_rcp_f32 v{T+r}, v{T+r}")
    for r in range(0, 16, 2): a(f"v_pk_mul_f32 {R(T+r,2)}, {R(T+r,2)}, {R(ACC+r,2)}")
    for r in range(8): a(f"v_cvt_pk_bf16_f32 v{16+r}, v{T+2*r}, v{T+2*r+1}")
    a("buffer_store_dwordx4 v[16:19], v6, s[36:39], s56 offen sc1\nbuffer_store_dwordx4 v[20:23], v6, s[36:39], s56 offen offset:2048 sc1")
    fill(F2)
    signal(a, 36, 57, 15, 25, 2*F2)

def prefetch_w2(a):
    a(f"""s_lshr_b32 s17, s2, 3
    s_cmp_lt_u32 s17, 25
    s_cbranch_scc1 K2_PFD
    s_lshl_b32 s17, s17, 2
    s_add_u32 s17, s17, s16
    s_sub_u32 s17, s17, 100
    s_and_b32 s18, s2, 7""")
    if opt('l2p'):
        srd(a, 20, 4, 2048*3584)
        a(f"""s_lshl_b32 s45, s17, 16
        s_add_u32 s45, s45, {HT+24576}
        s_lshr_b32 s46, s17, 2
        s_lshl_b32 s47, s16, 5
        s_add_u32 s46, s46, s47
        s_add_u32 s46, s46, 11
        s_mul_i32 s46, s46, {16*3584}
        s_mul_i32 s47, s18, 7
        s_lshr_b32 s47, s47, 1
        s_lshl_b32 s47, s47, 7
        s_add_u32 s46, s46, s47
        v_lshrrev_b32 v3, 2, v1
        v_mul_u32_u24 v3, 3584, v3
        v_and_b32 v4, 3, v1
        v_lshl_add_u32 v3, v4, 7, v3
        v_lshlrev_b32 v4, 7, v1""")
        for i in range(8):
            if i % 3 == 0: a(f"buffer_load_dword v{44+i}, v3, s[20:23], s46 offen\ns_add_u32 s46, s46, {112*3584}")
            elif opt('l2p') < 4: a(f"buffer_load_dword v{44+i}, v4, s[36:39], s45 offen\ns_add_u32 s45, s45, 8192")
        if opt('l2p') == 2: a("s_waitcnt vmcnt(0)")
    a(f"""s_mul_i32 s19, s17, {16*896}
    s_lshl_b32 s18, s18, 9
    s_lshl_b32 s17, s17, 18
    s_add_u32 s17, s17, s18
    v_lshrrev_b32 v3, 2, v1
    v_lshlrev_b32 v3, 12, v3
    v_and_b32 v4, 3, v1
    v_lshl_add_u32 v3, v4, 7, v3
    v_lshlrev_b32 v4, 7, v1""")
    srd(a, 20, 8, 1792*4096)
    for i in range(4*(opt('pw2', 3) & 1)): a(f"buffer_load_dword v{32+i}, v3, s[20:23], s17 offen\ns_add_u32 s17, s17, 65536")
    for i in range(opt('pw2', 3) & 2): a(f"buffer_load_dword v{40+i}, v4, s[76:79], s19 offen\ns_add_u32 s19, s19, 6144")
    a("K2_PFD:")

def gemm2_setup(a):
    ACC, TR, DIR = 32, 96, 112
    a(f"""s_lshr_b32 s34, s2, 3
    s_sub_u32 s34, 31, s34
    s_mul_i32 s30, s34, 9363
    s_lshr_b32 s30, s30, 16
    s_mul_i32 s31, s30, 7
    s_sub_u32 s31, s34, s31
    s_and_b32 s45, s2, 7
    s_lshl_b32 s45, s45, 2
    s_add_u32 s30, s30, s45
    s_mul_i32 s32, s16, {448*4096}
    s_lshl_b32 s45, s30, 7
    s_add_u32 s32, s32, s45
    s_mul_i32 s33, s31, {112*2048}
    s_mul_i32 s46, s16, {28*2048}
    s_add_u32 s33, s33, s46
    s_add_u32 s33, s33, {UU}
    s_mul_i32 s48, s16, {112*896}
    s_lshl_b32 s46, s31, 7
    s_add_u32 s48, s48, s46
    s_lshl_b32 s49, s30, 16
    s_lshl_b32 s46, s16, 14
    s_add_u32 s49, s49, s46
    s_add_u32 s49, s49, {OF}
    s_lshl_b32 s52, s31, 2
    s_add_u32 s52, s52, s16
    s_mul_i32 s52, s52, 896
    s_add_u32 s52, s52, {CU}
    s_lshl_b32 s53, s30, 3
    s_add_u32 s53, s53, s16
    s_lshl_b32 s53, s53, 7
    s_add_u32 s53, s53, {CO}
    s_lshl_b32 s46, s42, 10
    v_add_u32 v28, s46, v2
    v_xor_b32 v29, 1024, v28""")
    if opt('rot') & 4:
        a("s_and_b32 s46, s30, 3\ns_mul_i32 s46, s46, 7\ns_lshl_b32 s47, s31, 2\ns_add_u32 s46, s46, s47\ns_sub_u32 s47, s46, 28\ns_cselect_b32 s46, s46, s47")
        rotate(a, 32, 93, 46, 16*4096, 28, 47); rotate(a, 33, 58, 46, 2048, 28, 47)
    if opt('rot') & 8:
        a("s_add_u32 s46, s30, s31\ns_and_b32 s46, s46, 3")
        rotate(a, 48, 50, 46, 28*896, 4, 47); rotate(a, 49, 28, 46, 4096, 4, 47)
    dma_voff(a, 214, 1, 3, 4096, 47)
    srd(a, 84, 8, 1792*4096); srd(a, 24, 10, 4096)
    a(f"""s_cmp_lt_u32 s34, 28
    s_cselect_b32 s86, s86, 0
    v_and_b32 v3, 31, v1
    s_lshl_b32 s46, s43, 5
    v_add_u32 v213, s46, v3
    v_lshlrev_b32 v208, 2, v213
    v_xor_b32 v209, 128, v208
    v_lshlrev_b32 v212, 1, v213
    s_lshl_b32 s46, s30, 8
    s_add_u32 s46, s46, {GG}
    buffer_load_dword v208, v208, s[36:39], s46 offen
    buffer_load_dword v209, v209, s[36:39], s46 offen
    buffer_load_ushort v212, v212, s[24:27], s45 offen""")
    tr_addr(a, 26, 1, 3, 44, 43)
    dma_voff(a, 30, 1, 3, 896, 47)

def gemm_chain(a, only=None):
    ACC, TR, DIR = 32, 96, 112
    def mid(fill):
        gelu_out(a, fill)
        a(f"K2_G2:\ns_setprio {opt('p2', 2)}")
        stamp(a, 2)
        a("s_cmp_ge_u32 s34, 28\ns_cbranch_scc1 K2_WEND")
        red_addr(a, 8, 1, 16, 0, RD2*2048, 47)
    def scale(fill):
        stamp(a, 4)
        a("v_sub_f32 v208, 1.0, v208\nv_sub_f32 v210, 1.0, v209\ns_nop 7\ns_nop 1")
        for j in range(4):
            for r in range(0, 16, 2):
                a(f"v_pk_mul_f32 {R(ACC+16*j+r,2)}, {R(ACC+16*j+r,2)}, {R(210 if j & 1 else 208,2)} op_sel_hi:[1,0]")
        a(f"""v_lshlrev_b32 v212, 16, v212
        v_mul_f32 v212, v212, v208
        v_mul_u32_u24 v24, 896, v213
        v_lshrrev_b32 v3, 5, v1
        v_lshl_add_u32 v24, v3, 4, v24
        s_mul_i32 s46, s30, {64*896}
        s_lshl_b32 s47, s31, 7
        s_add_u32 s46, s46, s47
        s_lshl_b32 s47, s42, 6
        s_add_u32 s46, s46, s47""")
        for r in range(0, 16, 2):
            a(f"v_pk_add_f32 {R(ACC+r,2)}, {R(ACC+r,2)}, v[212:213] op_sel_hi:[1,0]")
    l0, l1, l2, tp = opt('l0', 12), opt('l1', 6), opt('l2', 6), opt('tp', 3)
    steps = [dict(dma=(20, 4, 40, 16*3584), dir=(36, 6, 41, 2048), tra=12, a_is_tr=True, la=max(l1, l0 - i//tp), rot=opt('rot') & 2 and (88, 91)) for i in range(32)]
    steps += [dict(dma=(84, 214, 32, 16*4096), dir=(36, 28, 33, 2048), tra=26, a_is_tr=False, dflag='sc1', la=l2, rot=opt('rot') & 4 and (93, 58)) for i in range(28)]
    steps += [dict(dma=(76, 30, 48, (12 if i & 1 else 16)*896), dir=(36, 6, 49, 2048), tra=12, a_is_tr=True, dflag='sc1', la=l2, rot=opt('rot') & 8 and i & 1 and (50, 28)) for i in range(8)]
    steps[32]['first'] = True; steps[32]['before'] = mid
    steps[32]['gate'] = lambda: (poll(a, 36, 52, 28, 128, 1, 3, 25, opt('nap', 2)), stamp(a, 3))
    steps[60]['before'] = scale
    steps[60-l2]['peek'] = lambda: poll(a, 36, 53, 8, 512, 1, 216, 217, part=1)
    steps[60-l2]['check'] = lambda: (poll(a, 36, 53, 8, 512, 1, 216, 217, opt('nap', 2), part=2), stamp(a, 5))
    gemm_steps(a, steps, RD2, ACC, TR, DIR, 44, lambda: gemm2_setup(a), only)
    if only: return
    stamp(a, 6)
    a("s_nop 7\ns_nop 4")
    red_write(a, ACC, 8)
    lds_arrive(a, 14, 12, 25); lds_wait(a, 14, 12, 25)
    red_read(a, ACC, 9)
    for r in range(8): a(f"v_cvt_pk_bf16_f32 v{48+r}, v{ACC+2*r}, v{ACC+2*r+1}")
    a("s_nop 1")
    for p in range(2):
        a(f"v_permlane32_swap_b32 v{48+4*p}, v{50+4*p}\nv_permlane32_swap_b32 v{49+4*p}, v{51+4*p}")
    for p in range(2):
        a(f"buffer_store_dwordx4 {R(48+4*p,4)}, v24, s[80:83], s46 offen offset:{32*p}")

def k2(a):
    head(a, "k2_kernel")
    a("s_cmp_ge_u32 s2, 256\ns_cbranch_scc1 K2_END")
    for k in range(7): stamp(a, k)
    a(f"""s_load_dwordx2 s[14:15], s[0:1], 104
    s_load_dwordx8 s[4:11], s[0:1], 48
    s_load_dwordx2 s[12:13], s[0:1], 32
    s_load_dwordx2 s[28:29], s[0:1], 88
    v_lshrrev_b32 v2, 6, v0
    v_and_b32 v1, 63, v0
    s_mov_b32 s50, {hx(2.0**60)}
    v_readfirstlane_b32 s16, v2
    v_mov_b32 v14, {K2_CNT}
    v_mov_b32 v15, 0
    v_lshlrev_b32 v2, 4, v1
    ds_write2_b32 v14, v15, v15 offset0:0 offset1:1
    ds_write2_b32 v14, v15, v15 offset0:2 offset1:3
    s_waitcnt lgkmcnt(0)
    s_barrier""")
    srd(a, 36, 14, WS_END)
    a("s_cmp_ge_u32 s16, 4\ns_cbranch_scc1 K2_GEMM")
    attention(a)
    a(f"""K2_GEMM:
    s_setprio {opt('prio', 2)}
    s_sub_u32 s16, s16, 4
    s_lshr_b32 s42, s16, 1
    s_and_b32 s43, s16, 1
    s_mul_i32 s44, s16, {RD2*2048}
    s_lshl_b32 s46, s43, 10
    v_add_u32 v6, s46, v2
    v_xor_b32 v7, 1024, v6""")
    tr_addr(a, 12, 1, 3, 44, 42)
    srd(a, 76, 12, 448*896); srd(a, 80, 28, 2048*896)
    gemm1(a)
    gemm_chain(a)
    a("s_add_u32 s16, s16, 4\nK2_FIN:")
    stamp_out(a, 1, 7, 16, 36)
    a("K2_END:\ns_endpgm\nK2_PF:")
    prefetch_w2(a)
    lds_arrive(a, 14, 4, 25)
    gemm2_setup(a)
    gemm_chain(a, (32, F1 + F2))
    a("s_branch K2_G2\nK2_WEND:\ns_waitcnt vmcnt(0)\ns_endpgm")
```

```python
from gen_common import *
import math
XL, WQL, WKL, K1_LDS = 0, 29184, 129536, 155648

def proj_loop(a, stride, swap):
    D = 4
    def rd(ks):
        b = 32 + 8*(ks % D); base = 11 + ks // 14; o = (ks % 14)*16*stride
        a(f"ds_read_b128 {R(b,4)}, v10 offset:{32*ks}")
        a(f"ds_read_b64_tr_b16 {R(b+4,2)}, v{base} offset:{o}")
        a(f"ds_read_b64_tr_b16 {R(b+6,2)}, v{base} offset:{o+4*stride}")
    for ks in range(D - 1): rd(ks)
    for ks in range(28):
        if ks + D - 1 < 28: rd(ks + D - 1)
        a(f"s_waitcnt lgkmcnt({3*min(D-1, 27-ks)})")
        b = 32 + 8*(ks % D)
        x, y = (b, b+4) if swap else (b+4, b)
        mfma(a, 16, x, y, None if ks == 0 else 16)
    a("s_nop 7\ns_nop 4")

def w_addr(a, stride, base_expr_s):
    a(f"""v_lshrrev_b32 v3, 5, v1
    v_lshlrev_b32 v3, 3, v3
    v_bfe_u32 v4, v1, 2, 2
    v_add_u32 v3, v3, v4
    v_mul_u32_u24 v11, {stride}, v3
    v_bfe_u32 v4, v1, 4, 1
    v_lshl_add_u32 v11, v4, 5, v11
    v_and_b32 v4, 3, v1
    v_lshl_add_u32 v11, v4, 3, v11
    v_add_u32 v11, s{base_expr_s}, v11
    v_add_u32 v12, {14*16*stride}, v11""")

def pack_store(a, soff):
    for r in range(8): a(f"v_cvt_pk_bf16_f32 v{32+r}, v{16+2*r}, v{17+2*r}")

def rowsum16(a, v):
    for sh in (8, 4, 2, 1):
        a(f"s_nop 1\nv_add_f32_dpp v{v}, v{v}, v{v} row_ror:{sh} row_mask:0xf bank_mask:0xf")

def k1(a):
    head(a, "k1_kernel")
    a("s_cmp_ge_u32 s2, 256\ns_cbranch_scc1 K1_END")
    stamp(a, 0)
    a("""s_load_dwordx4 s[4:7], s[0:1], 0
    s_load_dwordx4 s[8:11], s[0:1], 16
    s_load_dwordx2 s[12:13], s[0:1], 80
    s_load_dwordx2 s[14:15], s[0:1], 104
    s_load_dwordx2 s[48:49], s[0:1], 48
    s_load_dwordx2 s[76:77], s[0:1], 32
    v_lshrrev_b32 v2, 6, v0
    v_and_b32 v1, 63, v0
    s_and_b32 s17, s2, 7
    v_readfirstlane_b32 s16, v2
    s_lshl_b32 s17, s17, 3
    s_lshr_b32 s18, s2, 5
    s_add_u32 s17, s17, s18
    s_bfe_u32 s18, s2, 0x20003
    v_lshlrev_b32 v2, 4, v1
    s_lshl_b32 s40, s17, 5
    s_lshl_b32 s41, s16, 2
    s_add_u32 s40, s40, s41
    s_mul_i32 s40, s40, 896
    s_mul_i32 s41, s41, 912
    v_mul_u32_u24 v3, 4682, v0
    v_lshrrev_b32 v3, 16, v3
    v_mul_u32_u24 v4, 14, v3
    v_sub_u32 v4, v0, v4
    v_mul_u32_u24 v5, 896, v3
    v_lshl_add_u32 v5, v4, 4, v5
    s_mul_i32 s42, s18, 224
    s_lshl_b32 s43, s16, 10
    s_waitcnt lgkmcnt(0)""")
    srd(a, 20, 4, 2048*896); srd(a, 24, 6, 448*896); srd(a, 36, 14, WS_END)
    a(f"""s_cmp_lg_u32 s16, 7
    s_cbranch_scc1 K1_NZ
    s_lshl_b32 s44, s2, 7
    s_add_u32 s44, s44, {CU}
    v_mov_b32 v6, 0
    v_lshlrev_b32 v7, 2, v1
    s_mov_b64 exec, 15
    buffer_store_dword v6, v7, s[36:39], s44 offen
    s_add_u32 s44, s44, {CO-CU}
    buffer_store_dword v6, v7, s[36:39], s44 offen
    K1_NZ:
    s_mov_b32 exec_lo, -1
    s_mov_b32 exec_hi, 0xffffff""")
    for r in range(4):
        a(f"s_add_u32 m0, s41, {XL+r*912}\ns_add_u32 s44, s40, {r*896}\nbuffer_load_dwordx4 v2, s[20:23], s44 offen lds")
    a("s_mov_b32 exec_hi, -1")
    a("s_cmp_lt_u32 s16, 4\ns_cbranch_scc1 K1_WQ\ns_cmp_lt_u32 s18, 2\ns_cbranch_scc1 K1_NOLN0")
    srd(a, 32, 12, 896)
    a("""s_sub_u32 s45, s16, 4
    s_lshl_b32 s45, s45, 2
    v_lshrrev_b32 v6, 4, v1
    v_add_u32 v6, s45, v6
    v_and_b32 v7, 15, v1
    v_lshlrev_b32 v7, 3, v7
    v_mul_u32_u24 v8, 896, v6
    v_add_u32 v8, v8, v7
    s_lshl_b32 s46, s17, 1
    s_add_u32 s46, s46, s18
    s_sub_u32 s46, s46, 2
    s_mul_i32 s47, s46, 14336""")
    for i in range(7): a(f"buffer_load_dwordx2 {R(16+2*i,2)}, v8, s[20:23], s47 offen offset:{128*i}")
    for i in range(7): a(f"buffer_load_dwordx2 {R(64+2*i,2)}, v7, s[32:35], 0 offen offset:{128*i}")
    a("K1_NOLN0:\ns_cmp_eq_u32 s16, 7\ns_cbranch_scc1 K1_W7")
    a("K1_WQ:")
    if opt('qr', 1):
        a(f"s_lshr_b32 s56, s2, 5\ns_mul_i32 s56, s56, 7\ns_lshr_b32 s56, s56, 2\ns_mul_i32 s56, s56, 7168\ns_add_u32 s43, s43, {WQL}")
        for i in range(14):
            a("s_add_u32 m0, s43, s56\ns_lshl2_add_u32 s44, s56, s42\nbuffer_load_dwordx4 v5, s[24:27], s44 offen lds")
            if i < 13: a("s_add_u32 s56, s56, 7168\ns_cmp_eq_u32 s56, 100352\ns_cselect_b32 s56, 0, s56")
    for i in range(0 if opt('qr', 1) else 14):
        a(f"s_add_u32 m0, s43, {WQL+i*7168}\ns_add_u32 s44, s42, {i*28672}\nbuffer_load_dwordx4 v5, s[24:27], s44 offen lds")
    a("s_cmp_lt_u32 s16, 4\ns_cbranch_scc1 K1_BAR\ns_cmp_lt_u32 s18, 2\ns_cbranch_scc1 K1_BAR\ns_branch K1_LN0")
    a("K1_W7:\ns_cmp_ge_u32 s18, 2\ns_cbranch_scc1 K1_LN0")
    a("s_cmp_eq_u32 s18, 0\ns_cselect_b32 s28, s8, s10\ns_cselect_b32 s29, s9, s11\ns_mov_b32 s30, 25088\ns_mov_b32 s31, 0x20000")
    for i in range(25):
        if i % 4 == 0: a(f"s_mov_b32 m0, {WKL+i*1024}\ns_mov_b32 s44, {i*1024}")
        a(f"buffer_load_dwordx4 v2, s[28:31], s44 offen offset:{(i%4)*1024} lds")
    a("s_branch K1_BAR")
    a("K1_LN0:")
    a("K1_LN1:\ns_mov_b64 exec, -1\ns_waitcnt vmcnt(14)\ns_cmp_lg_u32 s16, 7\ns_cbranch_scc1 K1_LN\ns_waitcnt vmcnt(0)")
    a("K1_LN:")
    a("v_mov_b32 v62, 0\nv_mov_b32 v60, 0\nv_mov_b32 v61, 0")
    for i in range(14):
        a(f"v_lshlrev_b32 v{32+2*i}, 16, v{16+i}\nv_and_b32 v{33+2*i}, 0xffff0000, v{16+i}")
        a(f"v_dot2_f32_bf16 v62, v{16+i}, v{64+i}, v62")
        a(f"v_pk_add_f32 v[60:61], v[60:61], {R(32+2*i,2)}")
    a("v_add_f32 v60, v60, v61")
    rowsum16(a, 60); rowsum16(a, 62)
    a(f"v_mul_f32 v60, {hx(1/448)}, v60\nv_mov_b32 v14, 0\nv_mov_b32 v15, 0")
    for i in range(14):
        a(f"v_pk_add_f32 {R(32+2*i,2)}, {R(32+2*i,2)}, v[60:61] op_sel_hi:[1,0] neg_lo:[0,1] neg_hi:[0,1]")
        a(f"v_pk_fma_f32 v[14:15], {R(32+2*i,2)}, {R(32+2*i,2)}, v[14:15]")
    a("v_add_f32 v14, v14, v15")
    rowsum16(a, 14)
    a(f"""v_mov_b32 v15, {hx(1e-5)}
    v_fmac_f32 v15, {hx(1/448)}, v14
    v_rsq_f32 v60, v15
    v_mul_f32 v62, {hx(-math.log2(math.e))}, v62
    v_exp_f32 v62, v62
    v_mul_u32_u24 v9, 912, v6
    v_add_f32 v62, 1.0, v62
    v_rcp_f32 v62, v62
    v_add_u32 v9, v9, v7
    v_add_u32 v9, {WKL}, v9""")
    for i in range(14):
        a(f"v_pk_mul_f32 {R(32+2*i,2)}, {R(32+2*i,2)}, v[60:61] op_sel_hi:[1,0]")
        a(f"v_cvt_pk_bf16_f32 v{16+i}, v{32+2*i}, v{33+2*i}")
        if i & 1: a(f"ds_write_b64 v9, {R(15+i,2)} offset:{128*(i//2)}")
    a(f"""s_cbranch_execz K1_BAR1
    v_lshlrev_b32 v6, 2, v6
    s_lshl_b32 s47, s46, 6
    s_add_u32 s47, s47, {GG}
    s_mov_b32 exec_lo, 0x10001
    s_mov_b32 exec_hi, 0x10001
    buffer_store_dword v62, v6, s[36:39], s47 offen
    s_branch K1_BAR1""")
    a("K1_BAR:")
    a("""v_and_b32 v3, 31, v1
    v_mul_u32_u24 v10, 912, v3
    v_lshrrev_b32 v3, 5, v1
    v_lshl_add_u32 v10, v3, 4, v10""")
    def pf():
        if opt('nr'):
            nr = opt('nr')
            a(f"""s_lshr_b32 s52, s2, 6
            s_lshl_b32 s52, s52, 9
            s_and_b32 s53, s2, 56
            s_mul_i32 s53, s53, {nr}
            s_add_u32 s52, s52, s53
            s_mul_i32 s52, s52, 28
            s_and_b32 s53, s2, 7
            s_mul_i32 s53, s53, 7
            s_lshr_b32 s53, s53, 1
            s_add_u32 s52, s52, s53
            s_lshl_b32 s52, s52, 7
            s_mov_b32 s50, {2048*3584}
            s_mov_b32 s51, 0x20000
            s_mov_b32 s53, {32*nr}
            v_lshrrev_b32 v13, 2, v0
            v_mul_u32_u24 v13, 3584, v13
            v_and_b32 v14, 3, v0
            v_lshl_add_u32 v13, v14, 7, v13
            v_cmp_gt_u32 s[54:55], s53, v0
            s_and_saveexec_b64 s[54:55], s[54:55]
            buffer_load_dword v13, v13, s[48:51], s52 offen
            s_mov_b64 exec, -1
            s_cmp_lg_u32 s16, 5
            s_cbranch_scc1 K1_PFD
            s_mov_b32 s78, {448*896}
            s_mov_b32 s79, 0x20000
            s_mul_i32 s52, s2, {13*128}
            v_lshlrev_b32 v14, 7, v1
            s_mov_b64 exec, 0x1fff
            buffer_load_dword v14, v14, s[76:79], s52 offen
            s_mov_b64 exec, -1
            K1_PFD:""")
            return
        if opt('pfc'):
            a(f"""s_mul_i32 s52, s2, 28672
            s_mov_b32 s50, {2048*3584}
            s_mov_b32 s51, 0x20000
            v_lshlrev_b32 v13, {opt('pfc')}, v0
            v_cmp_gt_u32 s[54:55], {28672 >> opt('pfc') >> 5}, v14
            s_and_saveexec_b64 s[54:55], s[54:55]
            buffer_load_dword v13, v13, s[48:51], s52 offen
            s_mov_b64 exec, -1""")
            return
        a(f"""s_mov_b32 s50, {2048*3584}
        s_mov_b32 s51, 0x20000
        s_add_u32 s52, s2, {opt('xs')}
        s_and_b32 s52, s52, 7
        s_mul_i32 s52, s52, 7
        s_lshr_b32 s52, s52, 1
        s_lshl_b32 s52, s52, 7
        s_lshr_b32 s53, s2, 3
        s_mul_i32 s53, s53, {64*3584}
        s_add_u32 s52, s52, s53
        v_lshrrev_b32 v13, 3, v0
        v_mul_u32_u24 v13, 3584, v13
        v_and_b32 v14, 7, v0
        v_lshl_add_u32 v13, v14, 6, v13
        s_bfe_u32 s53, s2, 0x30003
        s_cmp_lt_u32 s53, {opt('pfh', 8)}
        s_cselect_b32 s50, s50, 0
        buffer_load_dword v13, v13, s[48:51], s52 offen""")
    if opt('wu', 1):
        a("s_mov_b64 exec, 0\ns_cmp_eq_u32 s16, 0\ns_cbranch_scc1 K1_GO\ns_cmp_lt_u32 s18, 2\ns_cbranch_scc1 K1_WKV")
        a("s_cmp_eq_u32 s16, 1\ns_cbranch_scc1 K1_HT")
        if opt('wu', 1) & 2: a("s_cmp_eq_u32 s16, 2\ns_cbranch_scc1 K1_LN")
        a("K1_WKV:\ns_cmp_eq_u32 s16, 1\ns_cbranch_scc1 K1_KV")
    a("K1_BAR1:\ns_mov_b64 exec, -1\nv_lshrrev_b32 v14, 5, v0\nv_cmp_lt_u32 vcc, 31, v1")
    stamp(a, 1)
    if opt('pf1') == 1: pf()
    a(f"s_waitcnt vmcnt({1 if opt('pf1') == 1 else 0}) lgkmcnt(0)\ns_barrier")
    if opt('pf1') == 2: pf()
    stamp(a, 2)
    a("K1_GO:")
    a("s_cmp_ge_u32 s16, 4\ns_cbranch_scc1 K1_EXTRA")
    a(f"s_mul_i32 s44, s16, 56\ns_add_u32 s44, s44, {WQL}")
    w_addr(a, 224, 44)
    proj_loop(a, 224, False)
    a(f"s_mov_b32 s44, {hx(math.log2(math.e)/math.sqrt(28))}")
    for r in range(16): a(f"v_mul_f32 v{16+r}, s44, v{16+r}")
    pack_store(a, 0)
    a(f"""v_cndmask_b32 v38, v38, 0, vcc
    v_cndmask_b32 v39, v39, 0, vcc
    s_lshl_b32 s44, s17, 2
    s_add_u32 s44, s44, s18
    s_lshl_b32 s44, s44, 2
    s_add_u32 s44, s44, s16
    s_lshl_b32 s44, s44, 11
    s_branch K1_ST2""")
    a("K1_EXTRA:\ns_cmp_ge_u32 s18, 2\ns_cbranch_scc1 K1_HT\ns_cmp_lg_u32 s16, 4\ns_cbranch_scc1 K1_FIN")
    a(f"K1_KV:\ns_mov_b32 s44, {WKL}")
    w_addr(a, 56, 44)
    a("s_cmp_eq_u32 s18, 1\ns_cbranch_scc1 K1_V")
    proj_loop(a, 56, False)
    pack_store(a, 0)
    a(f"""v_mov_b32 v3, 0x3f803f80
    v_mov_b32 v4, 0x3f80
    v_cndmask_b32 v38, v38, v3, vcc
    v_cndmask_b32 v39, v39, v4, vcc
    s_lshl_b32 s44, s17, 12
    s_add_u32 s44, s44, {KV}
    s_branch K1_ST2""")
    a("K1_V:")
    proj_loop(a, 56, True)
    pack_store(a, 0)
    a("""v_and_b32 v4, 31, v1
    v_cmp_eq_u32 vcc, 28, v4
    v_mov_b32 v3, 0x3f803f80
    s_nop 0
    v_cndmask_b32 v3, 0, v3, vcc
    v_cmp_lt_u32 vcc, 27, v4
    s_nop 1""")
    for r in range(8): a(f"v_cndmask_b32 v{32+r}, v{32+r}, v3, vcc")
    a(f"s_lshl_b32 s44, s17, 12\ns_add_u32 s44, s44, {KV+2048}")
    a("""K1_ST2:
    buffer_store_dwordx4 v[32:35], v2, s[36:39], s44 offen
    buffer_store_dwordx4 v[36:39], v2, s[36:39], s44 offen offset:1024
    s_branch K1_FIN""")
    a(f"""K1_HT:
    v_lshrrev_b32 v3, 5, v1
    v_lshlrev_b32 v3, 2, v3
    v_bfe_u32 v4, v1, 2, 2
    v_add_u32 v3, v3, v4
    v_mul_u32_u24 v11, 912, v3
    v_bfe_u32 v4, v1, 4, 1
    v_lshl_add_u32 v11, v4, 5, v11
    v_and_b32 v4, 3, v1
    v_lshl_add_u32 v11, v4, 3, v11
    s_sub_u32 s45, s16, 4
    s_lshl_b32 s44, s45, 6
    s_add_u32 s44, s44, {WKL}
    v_add_u32 v11, s44, v11
    s_lshl_b32 s46, s17, 1
    s_add_u32 s46, s46, s18
    s_sub_u32 s46, s46, 2
    s_lshl_b32 s46, s46, 11
    s_lshr_b32 s44, s45, 1
    s_lshl_b32 s44, s44, 18
    s_add_u32 s46, s46, s44
    s_and_b32 s44, s45, 1
    s_lshl_b32 s44, s44, 10
    s_add_u32 s46, s46, s44
    s_add_u32 s46, s46, {HT}""")
    for i in range(4):
        a(f"ds_read_b64_tr_b16 {R(32+4*i,2)}, v11 offset:{256*i}\nds_read_b64_tr_b16 {R(34+4*i,2)}, v11 offset:{256*i+8*912}")
    for i in range(4):
        if i == 3: a("s_cmp_ge_u32 s45, 2\ns_cbranch_scc1 K1_FIN")
        a(f"s_waitcnt lgkmcnt({6-2*i})\nbuffer_store_dwordx4 {R(32+4*i,4)}, v2, s[36:39], s46 offen\ns_add_u32 s46, s46, {2<<18}")
    a("K1_FIN:\ns_cbranch_execz K1_BAR1")
    stamp_out(a, 0, 3, 16, 36)
    a("K1_END:\ns_endpgm")
```

```python
from gen_common import *
import math
RD2 = opt('rd', 12)
K2_ATT = 4*RD2*2048
K2_CNT = K2_ATT + 49152
K2_LDS = K2_CNT + 64
Q, O, KVR, S, P = 16, 48, 112, 176, 208

def max16(a, dst, s, first):
    if first:
        a(f"v_max3_f32 v{dst}, v{s}, v{s+1}, v{s+2}")
        for r in range(3, 15, 2): a(f"v_max3_f32 v{dst}, v{dst}, v{s+r}, v{s+r+1}")
        a(f"v_max_f32 v{dst}, v{dst}, v{s+15}")
    else:
        for r in range(0, 16, 2): a(f"v_max3_f32 v{dst}, v{dst}, v{s+r}, v{s+r+1}")

def halfmax(a, v, t):
    a(f"v_mov_b32 v{t}, v{v}\ns_nop 1\nv_permlane32_swap_b32 v{v}, v{t}\nv_max_f32 v{v}, v{v}, v{t}")

def kv_load(a, slot, pr=False, rot=True):
    if pr: a("s_setprio 3")
    for i in range(4):
        a(f"buffer_load_dwordx4 {R(KVR+16*slot+4*i,4)}, v2, s[20:23], s41 offen offset:{1024*i}")
    a("s_add_u32 s41, s41, 4096")
    if rot and opt('rot') & 1: a("s_cmp_eq_u32 s41, s57\ns_cselect_b32 s41, s56, s41")
    if pr: a(f"s_setprio {opt('aprio')}")

def attention(a):
    a('s_setprio 3')
    a("s_and_b32 s3, s2, 7\ns_lshl_b32 s3, s3, 5\ns_lshr_b32 s17, s2, 3\ns_or_b32 s3, s3, s17" if opt('vid', 1) else "s_mov_b32 s3, s2")
    a(f"""s_lshr_b32 s17, s3, 2
    s_and_b32 s18, s3, 3
    s_lshl_b32 s41, s16, 16
    s_add_u32 s41, s41, {KV}
    s_mov_b32 s40, {KV}
    v_and_b32 v3, 31, v1
    v_lshlrev_b32 v3, 2, v3
    s_lshl_b32 s42, s17, 7
    s_add_u32 s42, s42, {GG}
    v_cmp_lt_u32 s[46:47], 31, v1""")
    a("s_mov_b32 s20, s14\ns_mov_b32 s21, s15\ns_add_u32 s22, s41, 65536\ns_mov_b32 s23, 0x20000")
    if opt('rot') & 1: a("s_bfe_u32 s43, s2, 0x40003"); rotate(a, 41, 56, 43, 4096, 16, 43)
    for i in range(2): a(f"buffer_load_dwordx4 {R(P+4*i,4)}, v2, s[36:39], s40 offen offset:{1024*i}")
    for j in range(4):
        a(f"s_xor_b32 s43, s16, {j}\ns_lshl_b32 s44, s3, 2\ns_add_u32 s43, s43, s44\ns_lshl_b32 s43, s43, 11")
        for i in range(2): a(f"buffer_load_dwordx4 {R(Q+8*j+4*i,4)}, v2, s[36:39], s43 offen offset:{1024*i}")
    a("buffer_load_dword v4, v3, s[36:39], s42 offen")
    for t in range(3): kv_load(a, t)
    red_addr(a, 8, 1, 16, K2_ATT-4096, 12288, 43)
    for j in range(4):
        a(f"s_waitcnt vmcnt({13+2*(3-j)})")
        mfma(a, O+16*j, P, Q+8*j, None); mfma(a, O+16*j, P+4, Q+8*j+4, O+16*j)
    a("s_nop 6")
    for j in range(4):
        max16(a, 5, O+16*j, True); halfmax(a, 5, 6)
        a(f"v_cvt_pk_bf16_f32 v5, -v5, 0\nv_cndmask_b32 v{Q+8*j+6}, v{Q+8*j+6}, v5, s[46:47]")
    for r in range(64): a(f"v_mov_b32 v{O+r}, 0")
    stamp(a, 1)
    a(f"s_setprio {opt('aprio')}")
    a("s_waitcnt vmcnt(8)")
    mfma(a, S, KVR, Q, None); mfma(a, S, KVR+4, Q+4, S)
    a("s_mov_b32 s45, 0\ns_cmp_lg_u32 s45, 0\ns_nop 7\ns_nop 1\nK2_ALOOP:")
    for u in range(16):
        t, j = u >> 2, u & 3
        sc, sn = S + 16*(u & 1), S + 16*((u + 1) & 1)
        pc, pp = P + 8*(u & 1), P + 8*((u + 1) & 1)
        tp, jp = ((u - 1) >> 2) & 3, (u - 1) & 3
        tn, jn = ((u + 1) >> 2) & 3, (u + 1) & 3
        def ex(q, r0=0, r1=4):
            for r in range(r0, r1): a(f"v_exp_f32 v{sc+4*q+r}, v{sc+4*q+r}")
        def cv(q):
            for r in range(2): a(f"v_cvt_pk_bf16_f32 v{pc+2*q+r}, v{sc+4*q+2*r}, v{sc+4*q+2*r+1}")
        if j == 3: a("s_waitcnt vmcnt(8)")
        mfma(a, sn, KVR+16*tn, Q+8*jn, None)
        ex(0)
        mfma(a, sn, KVR+16*tn+4, Q+8*jn+4, sn)
        ex(1); cv(0)
        if u == 0: a("s_cbranch_scc0 K2_AENT")
        mfma(a, O+16*jp, KVR+16*tp+12, pp+4, O+16*jp)
        if u == 0: a("K2_AENT:")
        if j == 0: kv_load(a, tp, opt('kvp', 1))
        ex(2); cv(1); ex(3, 0, 2)
        mfma(a, O+16*j, KVR+16*t+8, pc, O+16*j)
        ex(3, 2, 4); cv(2); cv(3)
        if u == 15: a("s_add_u32 s45, s45, 1\ns_cmp_lt_u32 s45, 4\ns_cbranch_scc1 K2_ALOOP")
    mfma(a, O+48, KVR+48+12, P+12, O+48)
    stamp(a, 2)
    a('s_setprio 3')
    lds_wait(a, 14, 4, 5)
    a("s_nop 7")
    red_write(a, O, 8)
    lds_arrive(a, 14, 8, 5); lds_wait(a, 14, 8, 5)
    stamp(a, 3)
    red_read(a, O, 9)
    a(f"v_mov_b32 v6, v{O+12}\nv_mov_b32 v7, v{O+12}\nv_pk_mul_f32 v[12:13], {R(O,2)}, 0")
    for r in range(2, 16, 2): a(f"v_pk_fma_f32 v[12:13], {R(O+r,2)}, 0, v[12:13]")
    a(f"""v_permlane32_swap_b32 v6, v7
    v_cmp_nlt_f32 vcc, {hx(2.0**-30)}, v7
    v_cmp_ngt_f32 s[48:49], s50, v7
    v_cmp_u_f32 s[52:53], v12, v13
    s_or_b64 vcc, vcc, s[48:49]
    s_or_b64 vcc, vcc, s[52:53]
    {'s_branch' if opt('force') else 's_cbranch_vccnz'} K2_SLOW
    K2_NORM:
    v_rcp_f32 v7, v7
    s_lshr_b32 s43, s17, 1
    s_lshl_b32 s43, s43, 16
    v_mul_f32 v6, v7, v4
    s_lshl_b32 s44, s18, 2
    s_add_u32 s44, s44, s16
    s_lshl_b32 s44, s44, 12
    s_add_u32 s43, s43, s44
    s_and_b32 s44, s17, 1
    s_lshl_b32 s44, s44, 10
    s_add_u32 s43, s43, s44
    s_add_u32 s43, s43, {OF}""")
    for r in range(0, 16, 2):
        a(f"v_pk_mul_f32 {R(O+r,2)}, {R(O+r,2)}, v[6:7] op_sel_hi:[1,0]")
        a(f"v_cvt_pk_bf16_f32 v{P+r//2}, v{O+r}, v{O+r+1}")
    a(f"""v_cndmask_b32 v{P+6}, v{P+6}, 0, s[46:47]
    v_cndmask_b32 v{P+7}, v{P+7}, 0, s[46:47]
    buffer_store_dwordx4 {R(P,4)}, v2, s[36:39], s43 offen sc1
    buffer_store_dwordx4 {R(P+4,4)}, v2, s[36:39], s43 offen offset:2048 sc1
    s_lshl_b32 s43, s3, 5
    s_add_u32 s43, s43, s16
    s_lshl_b32 s43, s43, 2
    s_add_u32 s43, s43, {CO}""")
    signal(a, 36, 43, 15, 5)
    a("s_branch K2_FIN")
    a(f"K2_SLOW:\nv_cndmask_b32 v{Q+6}, v{Q+6}, 0, s[46:47]\nv_mov_b32 v5, 0xff800000\ns_mov_b32 s41, {KV}\ns_mov_b32 s22, {KV+64*4096}")
    a("K2_S1:")
    kv_load(a, 0, rot=False); a("s_waitcnt vmcnt(0)")
    mfma(a, S, KVR, Q, None); mfma(a, S, KVR+4, Q+4, S)
    a("s_nop 7\ns_nop 5"); max16(a, 5, S, False)
    a("s_cmp_lt_u32 s41, s22\ns_cbranch_scc1 K2_S1")
    halfmax(a, 5, 6)
    a(f"""v_and_b32 v6, 0xffff0000, v5
    v_sub_f32 v5, v5, v6
    v_and_b32 v7, 0xffff0000, v5
    v_sub_f32 v5, v5, v7
    v_cvt_pk_bf16_f32 v6, -v6, -v7
    v_cvt_pk_bf16_f32 v5, -v5, 0
    v_cndmask_b32 v{Q+6}, v{Q+6}, v6, s[46:47]
    v_cndmask_b32 v{Q+7}, v{Q+7}, v5, s[46:47]
    s_mov_b32 s41, {KV}""")
    for r in range(16): a(f"v_mov_b32 v{O+r}, 0")
    a("K2_S2:")
    kv_load(a, 0, rot=False); a("s_waitcnt vmcnt(0)")
    mfma(a, S, KVR, Q, None); mfma(a, S, KVR+4, Q+4, S)
    a("s_nop 7\ns_nop 5")
    for r in range(16): a(f"v_exp_f32 v{S+r}, v{S+r}")
    for r in range(8): a(f"v_cvt_pk_bf16_f32 v{P+r}, v{S+2*r}, v{S+2*r+1}")
    a("s_nop 1")
    mfma(a, O, KVR+8, P, O); mfma(a, O, KVR+12, P+4, O)
    a(f"""s_cmp_lt_u32 s41, s22
    s_cbranch_scc1 K2_S2
    s_nop 7
    s_nop 5
    v_mov_b32 v6, v{O+12}
    v_mov_b32 v7, v{O+12}
    s_nop 1
    v_permlane32_swap_b32 v6, v7
    s_nop 1
    s_branch K2_NORM""")

def gemm1(a):
    ACC, TR, DIR = 32, 96, 112
    a(f"""s_and_b32 s17, s2, 7
    s_mul_i32 s18, s17, 49
    s_add_u32 s19, s18, 50
    s_add_u32 s18, s18, 1
    s_lshr_b32 s18, s18, 1
    s_lshr_b32 s19, s19, 1
    s_lshr_b32 s17, s2, 3
    s_add_u32 s17, s17, s18
    s_cmp_ge_u32 s17, s19
    s_cbranch_scc1 K2_PF
    s_mul_i32 s18, s17, 9363
    s_lshr_b32 s18, s18, 16
    s_mul_i32 s19, s18, 7
    s_sub_u32 s19, s17, s19
    s_mul_i32 s40, s16, {512*3584}
    s_lshl_b32 s45, s18, 7
    s_add_u32 s40, s40, s45
    s_lshl_b32 s41, s19, 18
    s_lshl_b32 s46, s16, 16
    s_add_u32 s41, s41, s46
    s_add_u32 s41, s41, {HT}""")
    if opt('rot') & 2:
        a("s_lshl_b32 s46, s18, 1\ns_add_u32 s46, s46, s19\ns_and_b32 s46, s46, 7\ns_lshl_b32 s46, s46, 2")
        rotate(a, 40, 88, 46, 16*3584, 32, 47); rotate(a, 41, 91, 46, 2048, 32, 47)
    dma_voff(a, 4, 1, 3, 3584, 47)
    a("""v_lshrrev_b32 v3, 5, v1
    v_lshlrev_b32 v3, 3, v3
    s_lshl_b32 s46, s42, 6
    s_add_u32 s46, s46, s45""")
    srd(a, 20, 4, 2048*3584); srd(a, 24, 6, 3584)
    for g in range(4): a(f"buffer_load_dwordx2 {R(16+2*g,2)}, v3, s[24:27], s46 offen offset:{16*g}")
    red_addr(a, 8, 1, 16, K2_ATT-4096, 12288, 47)

F1, F2 = opt('f1'), opt('f2')
def gelu_out(a, fill):
    ACC = 32
    stamp(a, 1)
    a("s_nop 7\ns_nop 4")
    red_write(a, ACC, 8)
    lds_arrive(a, 14, 0, 25)
    fill(F1)
    lds_wait(a, 14, 0, 25)
    red_read(a, ACC, 9)
    lds_arrive(a, 14, 4, 25)
    c = 2*math.sqrt(2/math.pi)*math.log2(math.e)
    a(f"""s_mov_b32 s46, {hx(-c*0.044715)}
    v_mov_b32 v24, {hx(-c)}
    s_mul_i32 s56, s19, {112*2048}
    s_lshl_b32 s57, s18, 1
    s_add_u32 s57, s57, s42
    s_lshl_b32 s57, s57, 12
    s_add_u32 s56, s56, s57
    s_add_u32 s56, s56, {UU}
    s_mul_i32 s57, s19, 28
    s_add_u32 s57, s57, s18
    s_lshl_b32 s57, s57, 5
    s_add_u32 s57, s57, s16
    s_lshl_b32 s57, s57, 2
    s_add_u32 s57, s57, {CU}""")
    T = 48
    for r in range(16):
        if r & 1: a(f"v_and_b32 v{T+r}, 0xffff0000, v{16+r//2}")
        else: a(f"v_lshlrev_b32 v{T+r}, 16, v{16+r//2}")
    for r in range(0, 16, 2): a(f"v_pk_add_f32 {R(ACC+r,2)}, {R(ACC+r,2)}, {R(T+r,2)}")
    for r in range(0, 16, 2): a(f"v_pk_mul_f32 {R(T+r,2)}, {R(ACC+r,2)}, {R(ACC+r,2)}")
    for r in range(16): a(f"v_fma_f32 v{T+r}, v{T+r}, s46, v24")
    for r in range(0, 16, 2): a(f"v_pk_mul_f32 {R(T+r,2)}, {R(T+r,2)}, {R(ACC+r,2)}")
    for r in range(16): a(f"v_exp_f32 v{T+r}, v{T+r}")
    for r in range(16): a(f"v_add_f32 v{T+r}, 1.0, v{T+r}")
    for r in range(16): a(f"v_rcp_f32 v{T+r}, v{T+r}")
    for r in range(0, 16, 2): a(f"v_pk_mul_f32 {R(T+r,2)}, {R(T+r,2)}, {R(ACC+r,2)}")
    for r in range(8): a(f"v_cvt_pk_bf16_f32 v{16+r}, v{T+2*r}, v{T+2*r+1}")
    a("buffer_store_dwordx4 v[16:19], v6, s[36:39], s56 offen sc1\nbuffer_store_dwordx4 v[20:23], v6, s[36:39], s56 offen offset:2048 sc1")
    fill(F2)
    signal(a, 36, 57, 15, 25, 2*F2)

def prefetch_w2(a):
    a(f"""s_lshr_b32 s17, s2, 3
    s_cmp_lt_u32 s17, 25
    s_cbranch_scc1 K2_PFD
    s_lshl_b32 s17, s17, 2
    s_add_u32 s17, s17, s16
    s_sub_u32 s17, s17, 100
    s_and_b32 s18, s2, 7""")
    if opt('l2p'):
        srd(a, 20, 4, 2048*3584)
        a(f"""s_lshl_b32 s45, s17, 16
        s_add_u32 s45, s45, {HT+24576}
        s_lshr_b32 s46, s17, 2
        s_lshl_b32 s47, s16, 5
        s_add_u32 s46, s46, s47
        s_add_u32 s46, s46, 11
        s_mul_i32 s46, s46, {16*3584}
        s_mul_i32 s47, s18, 7
        s_lshr_b32 s47, s47, 1
        s_lshl_b32 s47, s47, 7
        s_add_u32 s46, s46, s47
        v_lshrrev_b32 v3, 2, v1
        v_mul_u32_u24 v3, 3584, v3
        v_and_b32 v4, 3, v1
        v_lshl_add_u32 v3, v4, 7, v3
        v_lshlrev_b32 v4, 7, v1""")
        for i in range(8):
            if i % 3 == 0: a(f"buffer_load_dword v{44+i}, v3, s[20:23], s46 offen\ns_add_u32 s46, s46, {112*3584}")
            elif opt('l2p') < 4: a(f"buffer_load_dword v{44+i}, v4, s[36:39], s45 offen\ns_add_u32 s45, s45, 8192")
        if opt('l2p') == 2: a("s_waitcnt vmcnt(0)")
    a(f"""s_mul_i32 s19, s17, {16*896}
    s_lshl_b32 s18, s18, 9
    s_lshl_b32 s17, s17, 18
    s_add_u32 s17, s17, s18
    v_lshrrev_b32 v3, 2, v1
    v_lshlrev_b32 v3, 12, v3
    v_and_b32 v4, 3, v1
    v_lshl_add_u32 v3, v4, 7, v3
    v_lshlrev_b32 v4, 7, v1""")
    srd(a, 20, 8, 1792*4096)
    for i in range(4*(opt('pw2', 3) & 1)): a(f"buffer_load_dword v{32+i}, v3, s[20:23], s17 offen\ns_add_u32 s17, s17, 65536")
    for i in range(opt('pw2', 3) & 2): a(f"buffer_load_dword v{40+i}, v4, s[76:79], s19 offen\ns_add_u32 s19, s19, 6144")
    a("K2_PFD:")

def gemm2_setup(a):
    ACC, TR, DIR = 32, 96, 112
    a(f"""s_lshr_b32 s34, s2, 3
    s_sub_u32 s34, 31, s34
    s_mul_i32 s30, s34, 9363
    s_lshr_b32 s30, s30, 16
    s_mul_i32 s31, s30, 7
    s_sub_u32 s31, s34, s31
    s_and_b32 s45, s2, 7
    s_lshl_b32 s45, s45, 2
    s_add_u32 s30, s30, s45
    s_mul_i32 s32, s16, {448*4096}
    s_lshl_b32 s45, s30, 7
    s_add_u32 s32, s32, s45
    s_mul_i32 s33, s31, {112*2048}
    s_mul_i32 s46, s16, {28*2048}
    s_add_u32 s33, s33, s46
    s_add_u32 s33, s33, {UU}
    s_mul_i32 s48, s16, {112*896}
    s_lshl_b32 s46, s31, 7
    s_add_u32 s48, s48, s46
    s_lshl_b32 s49, s30, 16
    s_lshl_b32 s46, s16, 14
    s_add_u32 s49, s49, s46
    s_add_u32 s49, s49, {OF}
    s_lshl_b32 s52, s31, 2
    s_add_u32 s52, s52, s16
    s_mul_i32 s52, s52, 896
    s_add_u32 s52, s52, {CU}
    s_lshl_b32 s53, s30, 3
    s_add_u32 s53, s53, s16
    s_lshl_b32 s53, s53, 7
    s_add_u32 s53, s53, {CO}
    s_lshl_b32 s46, s42, 10
    v_add_u32 v28, s46, v2
    v_xor_b32 v29, 1024, v28""")
    if opt('rot') & 4:
        a("s_and_b32 s46, s30, 3\ns_mul_i32 s46, s46, 7\ns_lshl_b32 s47, s31, 2\ns_add_u32 s46, s46, s47\ns_sub_u32 s47, s46, 28\ns_cselect_b32 s46, s46, s47")
        rotate(a, 32, 93, 46, 16*4096, 28, 47); rotate(a, 33, 58, 46, 2048, 28, 47)
    if opt('rot') & 8:
        a("s_add_u32 s46, s30, s31\ns_and_b32 s46, s46, 3")
        rotate(a, 48, 50, 46, 28*896, 4, 47); rotate(a, 49, 28, 46, 4096, 4, 47)
    dma_voff(a, 214, 1, 3, 4096, 47)
    srd(a, 84, 8, 1792*4096); srd(a, 24, 10, 4096)
    a(f"""s_cmp_lt_u32 s34, 28
    s_cselect_b32 s86, s86, 0
    v_and_b32 v3, 31, v1
    s_lshl_b32 s46, s43, 5
    v_add_u32 v213, s46, v3
    v_lshlrev_b32 v208, 2, v213
    v_xor_b32 v209, 128, v208
    v_lshlrev_b32 v212, 1, v213
    s_lshl_b32 s46, s30, 8
    s_add_u32 s46, s46, {GG}
    buffer_load_dword v208, v208, s[36:39], s46 offen
    buffer_load_dword v209, v209, s[36:39], s46 offen
    buffer_load_ushort v212, v212, s[24:27], s45 offen""")
    tr_addr(a, 26, 1, 3, 44, 43)
    dma_voff(a, 30, 1, 3, 896, 47)

def gemm_chain(a, only=None):
    ACC, TR, DIR = 32, 96, 112
    def mid(fill):
        gelu_out(a, fill)
        a(f"K2_G2:\ns_setprio {opt('p2', 2)}")
        stamp(a, 2)
        a("s_cmp_ge_u32 s34, 28\ns_cbranch_scc1 K2_WEND")
        red_addr(a, 8, 1, 16, 0, RD2*2048, 47)
    def scale(fill):
        stamp(a, 4)
        a("v_sub_f32 v208, 1.0, v208\nv_sub_f32 v210, 1.0, v209\ns_nop 7\ns_nop 1")
        for j in range(4):
            for r in range(0, 16, 2):
                a(f"v_pk_mul_f32 {R(ACC+16*j+r,2)}, {R(ACC+16*j+r,2)}, {R(210 if j & 1 else 208,2)} op_sel_hi:[1,0]")
        a(f"""v_lshlrev_b32 v212, 16, v212
        v_mul_f32 v212, v212, v208
        v_mul_u32_u24 v24, 896, v213
        v_lshrrev_b32 v3, 5, v1
        v_lshl_add_u32 v24, v3, 4, v24
        s_mul_i32 s46, s30, {64*896}
        s_lshl_b32 s47, s31, 7
        s_add_u32 s46, s46, s47
        s_lshl_b32 s47, s42, 6
        s_add_u32 s46, s46, s47""")
        for r in range(0, 16, 2):
            a(f"v_pk_add_f32 {R(ACC+r,2)}, {R(ACC+r,2)}, v[212:213] op_sel_hi:[1,0]")
    l0, l1, l2, tp = opt('l0', 12), opt('l1', 6), opt('l2', 6), opt('tp', 3)
    steps = [dict(dma=(20, 4, 40, 16*3584), dir=(36, 6, 41, 2048), tra=12, a_is_tr=True, la=max(l1, l0 - i//tp), rot=opt('rot') & 2 and (88, 91)) for i in range(32)]
    steps += [dict(dma=(84, 214, 32, 16*4096), dir=(36, 28, 33, 2048), tra=26, a_is_tr=False, dflag='sc1', la=l2, rot=opt('rot') & 4 and (93, 58)) for i in range(28)]
    steps += [dict(dma=(76, 30, 48, (12 if i & 1 else 16)*896), dir=(36, 6, 49, 2048), tra=12, a_is_tr=True, dflag='sc1', la=l2, rot=opt('rot') & 8 and i & 1 and (50, 28)) for i in range(8)]
    steps[32]['first'] = True; steps[32]['before'] = mid
    steps[32]['gate'] = lambda: (poll(a, 36, 52, 28, 128, 1, 3, 25, opt('nap', 2)), stamp(a, 3))
    steps[60]['before'] = scale
    steps[60-l2]['peek'] = lambda: poll(a, 36, 53, 8, 512, 1, 216, 217, part=1)
    steps[60-l2]['check'] = lambda: (poll(a, 36, 53, 8, 512, 1, 216, 217, opt('nap', 2), part=2), stamp(a, 5))
    gemm_steps(a, steps, RD2, ACC, TR, DIR, 44, lambda: gemm2_setup(a), only)
    if only: return
    stamp(a, 6)
    a("s_nop 7\ns_nop 4")
    red_write(a, ACC, 8)
    lds_arrive(a, 14, 12, 25); lds_wait(a, 14, 12, 25)
    red_read(a, ACC, 9)
    for r in range(8): a(f"v_cvt_pk_bf16_f32 v{48+r}, v{ACC+2*r}, v{ACC+2*r+1}")
    a("s_nop 1")
    for p in range(2):
        a(f"v_permlane32_swap_b32 v{48+4*p}, v{50+4*p}\nv_permlane32_swap_b32 v{49+4*p}, v{51+4*p}")
    for p in range(2):
        a(f"buffer_store_dwordx4 {R(48+4*p,4)}, v24, s[80:83], s46 offen offset:{32*p}")

def k2(a):
    head(a, "k2_kernel")
    a("s_cmp_ge_u32 s2, 256\ns_cbranch_scc1 K2_END")
    for k in range(7): stamp(a, k)
    a(f"""s_load_dwordx2 s[14:15], s[0:1], 104
    s_load_dwordx8 s[4:11], s[0:1], 48
    s_load_dwordx2 s[12:13], s[0:1], 32
    s_load_dwordx2 s[28:29], s[0:1], 88
    v_lshrrev_b32 v2, 6, v0
    v_and_b32 v1, 63, v0
    s_mov_b32 s50, {hx(2.0**60)}
    v_readfirstlane_b32 s16, v2
    v_mov_b32 v14, {K2_CNT}
    v_mov_b32 v15, 0
    v_lshlrev_b32 v2, 4, v1
    ds_write2_b32 v14, v15, v15 offset0:0 offset1:1
    ds_write2_b32 v14, v15, v15 offset0:2 offset1:3
    s_waitcnt lgkmcnt(0)
    s_barrier""")
    srd(a, 36, 14, WS_END)
    a("s_cmp_ge_u32 s16, 4\ns_cbranch_scc1 K2_GEMM")
    attention(a)
    a(f"""K2_GEMM:
    s_setprio {opt('prio', 2)}
    s_sub_u32 s16, s16, 4
    s_lshr_b32 s42, s16, 1
    s_and_b32 s43, s16, 1
    s_mul_i32 s44, s16, {RD2*2048}
    s_lshl_b32 s46, s43, 10
    v_add_u32 v6, s46, v2
    v_xor_b32 v7, 1024, v6""")
    tr_addr(a, 12, 1, 3, 44, 42)
    srd(a, 76, 12, 448*896); srd(a, 80, 28, 2048*896)
    gemm1(a)
    gemm_chain(a)
    a("s_add_u32 s16, s16, 4\nK2_FIN:")
    stamp_out(a, 1, 7, 16, 36)
    a("K2_END:\ns_endpgm\nK2_PF:")
    prefetch_w2(a)
    lds_arrive(a, 14, 4, 25)
    gemm2_setup(a)
    gemm_chain(a, (32, F1 + F2))
    a("s_branch K2_G2\nK2_WEND:\ns_waitcnt vmcnt(0)\ns_endpgm")
```

```python
from gen_common import *
import math
RD2 = opt('rd', 12)
K2_ATT = 4*RD2*2048
K2_CNT = K2_ATT + 49152
K2_LDS = K2_CNT + 64
Q, O, KVR, S, P = 16, 48, 112, 176, 208

def max16(a, dst, s, first):
    if first:
        a(f"v_max3_f32 v{dst}, v{s}, v{s+1}, v{s+2}")
        for r in range(3, 15, 2): a(f"v_max3_f32 v{dst}, v{dst}, v{s+r}, v{s+r+1}")
        a(f"v_max_f32 v{dst}, v{dst}, v{s+15}")
    else:
        for r in range(0, 16, 2): a(f"v_max3_f32 v{dst}, v{dst}, v{s+r}, v{s+r+1}")

def halfmax(a, v, t):
    a(f"v_mov_b32 v{t}, v{v}\ns_nop 1\nv_permlane32_swap_b32 v{v}, v{t}\nv_max_f32 v{v}, v{v}, v{t}")

def kv_load(a, slot, pr=False, rot=True):
    if pr: a("s_setprio 3")
    for i in range(4):
        a(f"buffer_load_dwordx4 {R(KVR+16*slot+4*i,4)}, v2, s[20:23], s41 offen offset:{1024*i}")
    a("s_add_u32 s41, s41, 4096")
    if rot and opt('rot') & 1: a("s_cmp_eq_u32 s41, s57\ns_cselect_b32 s41, s56, s41")
    if pr: a(f"s_setprio {opt('aprio')}")

def attention(a):
    a('s_setprio 3')
    a("s_and_b32 s3, s2, 7\ns_lshl_b32 s3, s3, 5\ns_lshr_b32 s17, s2, 3\ns_or_b32 s3, s3, s17" if opt('vid', 1) else "s_mov_b32 s3, s2")
    a(f"""s_lshr_b32 s17, s3, 2
    s_and_b32 s18, s3, 3
    s_lshl_b32 s41, s16, 16
    s_add_u32 s41, s41, {KV}
    s_mov_b32 s40, {KV}
    v_and_b32 v3, 31, v1
    v_lshlrev_b32 v3, 2, v3
    s_lshl_b32 s42, s17, 7
    s_add_u32 s42, s42, {GG}
    v_cmp_lt_u32 s[46:47], 31, v1""")
    a("s_mov_b32 s20, s14\ns_mov_b32 s21, s15\ns_add_u32 s22, s41, 65536\ns_mov_b32 s23, 0x20000")
    if opt('rot') & 1: a("s_bfe_u32 s43, s2, 0x40003"); rotate(a, 41, 56, 43, 4096, 16, 43)
    for i in range(2): a(f"buffer_load_dwordx4 {R(P+4*i,4)}, v2, s[36:39], s40 offen offset:{1024*i}")
    for j in range(4):
        a(f"s_xor_b32 s43, s16, {j}\ns_lshl_b32 s44, s3, 2\ns_add_u32 s43, s43, s44\ns_lshl_b32 s43, s43, 11")
        for i in range(2): a(f"buffer_load_dwordx4 {R(Q+8*j+4*i,4)}, v2, s[36:39], s43 offen offset:{1024*i}")
    a("buffer_load_dword v4, v3, s[36:39], s42 offen")
    for t in range(3): kv_load(a, t)
    red_addr(a, 8, 1, 16, K2_ATT-4096, 12288, 43)
    for j in range(4):
        a(f"s_waitcnt vmcnt({13+2*(3-j)})")
        mfma(a, O+16*j, P, Q+8*j, None); mfma(a, O+16*j, P+4, Q+8*j+4, O+16*j)
    a("s_nop 6")
    for j in range(4):
        max16(a, 5, O+16*j, True); halfmax(a, 5, 6)
        a(f"v_cvt_pk_bf16_f32 v5, -v5, 0\nv_cndmask_b32 v{Q+8*j+6}, v{Q+8*j+6}, v5, s[46:47]")
    for r in range(64): a(f"v_mov_b32 v{O+r}, 0")
    stamp(a, 1)
    a(f"s_setprio {opt('aprio')}")
    a("s_waitcnt vmcnt(8)")
    mfma(a, S, KVR, Q, None); mfma(a, S, KVR+4, Q+4, S)
    a("s_mov_b32 s45, 0\ns_cmp_lg_u32 s45, 0\ns_nop 7\ns_nop 1\nK2_ALOOP:")
    for u in range(16):
        t, j = u >> 2, u & 3
        sc, sn = S + 16*(u & 1), S + 16*((u + 1) & 1)
        pc, pp = P + 8*(u & 1), P + 8*((u + 1) & 1)
        tp, jp = ((u - 1) >> 2) & 3, (u - 1) & 3
        tn, jn = ((u + 1) >> 2) & 3, (u + 1) & 3
        def ex(q, r0=0, r1=4):
            for r in range(r0, r1): a(f"v_exp_f32 v{sc+4*q+r}, v{sc+4*q+r}")
        def cv(q):
            for r in range(2): a(f"v_cvt_pk_bf16_f32 v{pc+2*q+r}, v{sc+4*q+2*r}, v{sc+4*q+2*r+1}")
        if j == 3: a("s_waitcnt vmcnt(8)")
        mfma(a, sn, KVR+16*tn, Q+8*jn, None)
        ex(0)
        mfma(a, sn, KVR+16*tn+4, Q+8*jn+4, sn)
        ex(1); cv(0)
        if u == 0: a("s_cbranch_scc0 K2_AENT")
        mfma(a, O+16*jp, KVR+16*tp+12, pp+4, O+16*jp)
        if u == 0: a("K2_AENT:")
        if j == 0: kv_load(a, tp, opt('kvp', 1))
        ex(2); cv(1); ex(3, 0, 2)
        mfma(a, O+16*j, KVR+16*t+8, pc, O+16*j)
        ex(3, 2, 4); cv(2); cv(3)
        if u == 15: a("s_add_u32 s45, s45, 1\ns_cmp_lt_u32 s45, 4\ns_cbranch_scc1 K2_ALOOP")
    mfma(a, O+48, KVR+48+12, P+12, O+48)
    stamp(a, 2)
    a('s_setprio 3')
    lds_wait(a, 14, 4, 5)
    a("s_nop 7")
    red_write(a, O, 8)
    lds_arrive(a, 14, 8, 5); lds_wait(a, 14, 8, 5)
    stamp(a, 3)
    red_read(a, O, 9)
    a(f"v_mov_b32 v6, v{O+12}\nv_mov_b32 v7, v{O+12}\nv_pk_mul_f32 v[12:13], {R(O,2)}, 0")
    for r in range(2, 16, 2): a(f"v_pk_fma_f32 v[12:13], {R(O+r,2)}, 0, v[12:13]")
    a(f"""v_permlane32_swap_b32 v6, v7
    v_cmp_nlt_f32 vcc, {hx(2.0**-30)}, v7
    v_cmp_ngt_f32 s[48:49], s50, v7
    v_cmp_u_f32 s[52:53], v12, v13
    s_or_b64 vcc, vcc, s[48:49]
    s_or_b64 vcc, vcc, s[52:53]
    {'s_branch' if opt('force') else 's_cbranch_vccnz'} K2_SLOW
    K2_NORM:
    v_rcp_f32 v7, v7
    s_lshr_b32 s43, s17, 1
    s_lshl_b32 s43, s43, 16
    v_mul_f32 v6, v7, v4
    s_lshl_b32 s44, s18, 2
    s_add_u32 s44, s44, s16
    s_lshl_b32 s44, s44, 12
    s_add_u32 s43, s43, s44
    s_and_b32 s44, s17, 1
    s_lshl_b32 s44, s44, 10
    s_add_u32 s43, s43, s44
    s_add_u32 s43, s43, {OF}""")
    for r in range(0, 16, 2):
        a(f"v_pk_mul_f32 {R(O+r,2)}, {R(O+r,2)}, v[6:7] op_sel_hi:[1,0]")
        a(f"v_cvt_pk_bf16_f32 v{P+r//2}, v{O+r}, v{O+r+1}")
    a(f"""v_cndmask_b32 v{P+6}, v{P+6}, 0, s[46:47]
    v_cndmask_b32 v{P+7}, v{P+7}, 0, s[46:47]
    buffer_store_dwordx4 {R(P,4)}, v2, s[36:39], s43 offen sc1
    buffer_store_dwordx4 {R(P+4,4)}, v2, s[36:39], s43 offen offset:2048 sc1
    s_lshl_b32 s43, s3, 5
    s_add_u32 s43, s43, s16
    s_lshl_b32 s43, s43, 2
    s_add_u32 s43, s43, {CO}""")
    signal(a, 36, 43, 15, 5)
    a("s_branch K2_FIN")
    a(f"K2_SLOW:\nv_cndmask_b32 v{Q+6}, v{Q+6}, 0, s[46:47]\nv_mov_b32 v5, 0xff800000\ns_mov_b32 s41, {KV}\ns_mov_b32 s22, {KV+64*4096}")
    a("K2_S1:")
    kv_load(a, 0, rot=False); a("s_waitcnt vmcnt(0)")
    mfma(a, S, KVR, Q, None); mfma(a, S, KVR+4, Q+4, S)
    a("s_nop 7\ns_nop 5"); max16(a, 5, S, False)
    a("s_cmp_lt_u32 s41, s22\ns_cbranch_scc1 K2_S1")
    halfmax(a, 5, 6)
    a(f"""v_and_b32 v6, 0xffff0000, v5
    v_sub_f32 v5, v5, v6
    v_and_b32 v7, 0xffff0000, v5
    v_sub_f32 v5, v5, v7
    v_cvt_pk_bf16_f32 v6, -v6, -v7
    v_cvt_pk_bf16_f32 v5, -v5, 0
    v_cndmask_b32 v{Q+6}, v{Q+6}, v6, s[46:47]
    v_cndmask_b32 v{Q+7}, v{Q+7}, v5, s[46:47]
    s_mov_b32 s41, {KV}""")
    for r in range(16): a(f"v_mov_b32 v{O+r}, 0")
    a("K2_S2:")
    kv_load(a, 0, rot=False); a("s_waitcnt vmcnt(0)")
    mfma(a, S, KVR, Q, None); mfma(a, S, KVR+4, Q+4, S)
    a("s_nop 7\ns_nop 5")
    for r in range(16): a(f"v_exp_f32 v{S+r}, v{S+r}")
    for r in range(8): a(f"v_cvt_pk_bf16_f32 v{P+r}, v{S+2*r}, v{S+2*r+1}")
    a("s_nop 1")
    mfma(a, O, KVR+8, P, O); mfma(a, O, KVR+12, P+4, O)
    a(f"""s_cmp_lt_u32 s41, s22
    s_cbranch_scc1 K2_S2
    s_nop 7
    s_nop 5
    v_mov_b32 v6, v{O+12}
    v_mov_b32 v7, v{O+12}
    s_nop 1
    v_permlane32_swap_b32 v6, v7
    s_nop 1
    s_branch K2_NORM""")

def gemm1(a):
    ACC, TR, DIR = 32, 96, 112
    a(f"""s_and_b32 s17, s2, 7
    s_mul_i32 s18, s17, 49
    s_add_u32 s19, s18, 50
    s_add_u32 s18, s18, 1
    s_lshr_b32 s18, s18, 1
    s_lshr_b32 s19, s19, 1
    s_lshr_b32 s17, s2, 3
    s_add_u32 s17, s17, s18
    s_cmp_ge_u32 s17, s19
    s_cbranch_scc1 K2_PF
    s_mul_i32 s18, s17, 9363
    s_lshr_b32 s18, s18, 16
    s_mul_i32 s19, s18, 7
    s_sub_u32 s19, s17, s19
    s_mul_i32 s40, s16, {512*3584}
    s_lshl_b32 s45, s18, 7
    s_add_u32 s40, s40, s45
    s_lshl_b32 s41, s19, 18
    s_lshl_b32 s46, s16, 16
    s_add_u32 s41, s41, s46
    s_add_u32 s41, s41, {HT}""")
    if opt('rot') & 2:
        a("s_lshl_b32 s46, s18, 1\ns_add_u32 s46, s46, s19\ns_and_b32 s46, s46, 7\ns_lshl_b32 s46, s46, 2")
        rotate(a, 40, 88, 46, 16*3584, 32, 47); rotate(a, 41, 91, 46, 2048, 32, 47)
    dma_voff(a, 4, 1, 3, 3584, 47)
    a("""v_lshrrev_b32 v3, 5, v1
    v_lshlrev_b32 v3, 3, v3
    s_lshl_b32 s46, s42, 6
    s_add_u32 s46, s46, s45""")
    srd(a, 20, 4, 2048*3584); srd(a, 24, 6, 3584)
    for g in range(4): a(f"buffer_load_dwordx2 {R(16+2*g,2)}, v3, s[24:27], s46 offen offset:{16*g}")
    red_addr(a, 8, 1, 16, K2_ATT-4096, 12288, 47)

F1, F2 = opt('f1'), opt('f2')
def gelu_out(a, fill):
    ACC = 32
    stamp(a, 1)
    a("s_nop 7\ns_nop 4")
    red_write(a, ACC, 8)
    lds_arrive(a, 14, 0, 25)
    fill(F1)
    lds_wait(a, 14, 0, 25)
    red_read(a, ACC, 9)
    lds_arrive(a, 14, 4, 25)
    c = 2*math.sqrt(2/math.pi)*math.log2(math.e)
    a(f"""s_mov_b32 s46, {hx(-c*0.044715)}
    v_mov_b32 v24, {hx(-c)}
    s_mul_i32 s56, s19, {112*2048}
    s_lshl_b32 s57, s18, 1
    s_add_u32 s57, s57, s42
    s_lshl_b32 s57, s57, 12
    s_add_u32 s56, s56, s57
    s_add_u32 s56, s56, {UU}
    s_mul_i32 s57, s19, 28
    s_add_u32 s57, s57, s18
    s_lshl_b32 s57, s57, 5
    s_add_u32 s57, s57, s16
    s_lshl_b32 s57, s57, 2
    s_add_u32 s57, s57, {CU}""")
    T = 48
    for r in range(16):
        if r & 1: a(f"v_and_b32 v{T+r}, 0xffff0000, v{16+r//2}")
        else: a(f"v_lshlrev_b32 v{T+r}, 16, v{16+r//2}")
    for r in range(0, 16, 2): a(f"v_pk_add_f32 {R(ACC+r,2)}, {R(ACC+r,2)}, {R(T+r,2)}")
    for r in range(0, 16, 2): a(f"v_pk_mul_f32 {R(T+r,2)}, {R(ACC+r,2)}, {R(ACC+r,2)}")
    for r in range(16): a(f"v_fma_f32 v{T+r}, v{T+r}, s46, v24")
    for r in range(0, 16, 2): a(f"v_pk_mul_f32 {R(T+r,2)}, {R(T+r,2)}, {R(ACC+r,2)}")
    for r in range(16): a(f"v_exp_f32 v{T+r}, v{T+r}")
    for r in range(16): a(f"v_add_f32 v{T+r}, 1.0, v{T+r}")
    for r in range(16): a(f"v_rcp_f32 v{T+r}, v{T+r}")
    for r in range(0, 16, 2): a(f"v_pk_mul_f32 {R(T+r,2)}, {R(T+r,2)}, {R(ACC+r,2)}")
    for r in range(8): a(f"v_cvt_pk_bf16_f32 v{16+r}, v{T+2*r}, v{T+2*r+1}")
    a("buffer_store_dwordx4 v[16:19], v6, s[36:39], s56 offen sc1\nbuffer_store_dwordx4 v[20:23], v6, s[36:39], s56 offen offset:2048 sc1")
    fill(F2)
    signal(a, 36, 57, 15, 25, 2*F2)

def prefetch_w2(a):
    a(f"""s_lshr_b32 s17, s2, 3
    s_cmp_lt_u32 s17, 25
    s_cbranch_scc1 K2_PFD
    s_lshl_b32 s17, s17, 2
    s_add_u32 s17, s17, s16
    s_sub_u32 s17, s17, 100
    s_and_b32 s18, s2, 7""")
    if opt('l2p'):
        srd(a, 20, 4, 2048*3584)
        a(f"""s_lshl_b32 s45, s17, 16
        s_add_u32 s45, s45, {HT+24576}
        s_lshr_b32 s46, s17, 2
        s_lshl_b32 s47, s16, 5
        s_add_u32 s46, s46, s47
        s_add_u32 s46, s46, 11
        s_mul_i32 s46, s46, {16*3584}
        s_mul_i32 s47, s18, 7
        s_lshr_b32 s47, s47, 1
        s_lshl_b32 s47, s47, 7
        s_add_u32 s46, s46, s47
        v_lshrrev_b32 v3, 2, v1
        v_mul_u32_u24 v3, 3584, v3
        v_and_b32 v4, 3, v1
        v_lshl_add_u32 v3, v4, 7, v3
        v_lshlrev_b32 v4, 7, v1""")
        for i in range(8):
            if i % 3 == 0: a(f"buffer_load_dword v{44+i}, v3, s[20:23], s46 offen\ns_add_u32 s46, s46, {112*3584}")
            elif opt('l2p') < 4: a(f"buffer_load_dword v{44+i}, v4, s[36:39], s45 offen\ns_add_u32 s45, s45, 8192")
        if opt('l2p') == 2: a("s_waitcnt vmcnt(0)")
    a(f"""s_mul_i32 s19, s17, {16*896}
    s_lshl_b32 s18, s18, 9
    s_lshl_b32 s17, s17, 18
    s_add_u32 s17, s17, s18
    v_lshrrev_b32 v3, 2, v1
    v_lshlrev_b32 v3, 12, v3
    v_and_b32 v4, 3, v1
    v_lshl_add_u32 v3, v4, 7, v3
    v_lshlrev_b32 v4, 7, v1""")
    srd(a, 20, 8, 1792*4096)
    for i in range(4*(opt('pw2', 3) & 1)): a(f"buffer_load_dword v{32+i}, v3, s[20:23], s17 offen\ns_add_u32 s17, s17, 65536")
    for i in range(opt('pw2', 3) & 2): a(f"buffer_load_dword v{40+i}, v4, s[76:79], s19 offen\ns_add_u32 s19, s19, 6144")
    a("K2_PFD:")

def gemm2_setup(a):
    ACC, TR, DIR = 32, 96, 112
    a(f"""s_lshr_b32 s34, s2, 3
    s_sub_u32 s34, 31, s34
    s_mul_i32 s30, s34, 9363
    s_lshr_b32 s30, s30, 16
    s_mul_i32 s31, s30, 7
    s_sub_u32 s31, s34, s31
    s_and_b32 s45, s2, 7
    s_lshl_b32 s45, s45, 2
    s_add_u32 s30, s30, s45
    s_mul_i32 s32, s16, {448*4096}
    s_lshl_b32 s45, s30, 7
    s_add_u32 s32, s32, s45
    s_mul_i32 s33, s31, {112*2048}
    s_mul_i32 s46, s16, {28*2048}
    s_add_u32 s33, s33, s46
    s_add_u32 s33, s33, {UU}
    s_mul_i32 s48, s16, {112*896}
    s_lshl_b32 s46, s31, 7
    s_add_u32 s48, s48, s46
    s_lshl_b32 s49, s30, 16
    s_lshl_b32 s46, s16, 14
    s_add_u32 s49, s49, s46
    s_add_u32 s49, s49, {OF}
    s_lshl_b32 s52, s31, 2
    s_add_u32 s52, s52, s16
    s_mul_i32 s52, s52, 896
    s_add_u32 s52, s52, {CU}
    s_lshl_b32 s53, s30, 3
    s_add_u32 s53, s53, s16
    s_lshl_b32 s53, s53, 7
    s_add_u32 s53, s53, {CO}
    s_lshl_b32 s46, s42, 10
    v_add_u32 v28, s46, v2
    v_xor_b32 v29, 1024, v28""")
    if opt('rot') & 4:
        a("s_and_b32 s46, s30, 3\ns_mul_i32 s46, s46, 7\ns_lshl_b32 s47, s31, 2\ns_add_u32 s46, s46, s47\ns_sub_u32 s47, s46, 28\ns_cselect_b32 s46, s46, s47")
        rotate(a, 32, 93, 46, 16*4096, 28, 47); rotate(a, 33, 58, 46, 2048, 28, 47)
    if opt('rot') & 8:
        a("s_add_u32 s46, s30, s31\ns_and_b32 s46, s46, 3")
        rotate(a, 48, 50, 46, 28*896, 4, 47); rotate(a, 49, 28, 46, 4096, 4, 47)
    dma_voff(a, 214, 1, 3, 4096, 47)
    srd(a, 84, 8, 1792*4096); srd(a, 24, 10, 4096)
    a(f"""s_cmp_lt_u32 s34, 28
    s_cselect_b32 s86, s86, 0
    v_and_b32 v3, 31, v1
    s_lshl_b32 s46, s43, 5
    v_add_u32 v213, s46, v3
    v_lshlrev_b32 v208, 2, v213
    v_xor_b32 v209, 128, v208
    v_lshlrev_b32 v212, 1, v213
    s_lshl_b32 s46, s30, 8
    s_add_u32 s46, s46, {GG}
    buffer_load_dword v208, v208, s[36:39], s46 offen
    buffer_load_dword v209, v209, s[36:39], s46 offen
    buffer_load_ushort v212, v212, s[24:27], s45 offen""")
    tr_addr(a, 26, 1, 3, 44, 43)
    dma_voff(a, 30, 1, 3, 896, 47)

def gemm_chain(a, only=None):
    ACC, TR, DIR = 32, 96, 112
    def mid(fill):
        gelu_out(a, fill)
        a(f"K2_G2:\ns_setprio {opt('p2', 2)}")
        stamp(a, 2)
        a("s_cmp_ge_u32 s34, 28\ns_cbranch_scc1 K2_WEND\nK2_G3:")
        red_addr(a, 8, 1, 16, 0, RD2*2048, 47)
    def scale(fill):
        stamp(a, 4)
        a("v_sub_f32 v208, 1.0, v208\nv_sub_f32 v210, 1.0, v209\ns_nop 7\ns_nop 1")
        for j in range(4):
            for r in range(0, 16, 2):
                a(f"v_pk_mul_f32 {R(ACC+16*j+r,2)}, {R(ACC+16*j+r,2)}, {R(210 if j & 1 else 208,2)} op_sel_hi:[1,0]")
        a(f"""v_lshlrev_b32 v212, 16, v212
        v_mul_f32 v212, v212, v208
        v_mul_u32_u24 v24, 896, v213
        v_lshrrev_b32 v3, 5, v1
        v_lshl_add_u32 v24, v3, 4, v24
        s_mul_i32 s46, s30, {64*896}
        s_lshl_b32 s47, s31, 7
        s_add_u32 s46, s46, s47
        s_lshl_b32 s47, s42, 6
        s_add_u32 s46, s46, s47""")
        for r in range(0, 16, 2):
            a(f"v_pk_add_f32 {R(ACC+r,2)}, {R(ACC+r,2)}, v[212:213] op_sel_hi:[1,0]")
    l0, l1, l2, tp = opt('l0', 12), opt('l1', 6), opt('l2', 6), opt('tp', 3)
    steps = [dict(dma=(20, 4, 40, 16*3584), dir=(36, 6, 41, 2048), tra=12, a_is_tr=True, la=max(l1, l0 - i//tp), rot=opt('rot') & 2 and (88, 91)) for i in range(32)]
    steps += [dict(dma=(84, 214, 32, 16*4096), dir=(36, 28, 33, 2048), tra=26, a_is_tr=False, dflag='sc1', la=l2, rot=opt('rot') & 4 and (93, 58)) for i in range(28)]
    steps += [dict(dma=(76, 30, 48, (12 if i & 1 else 16)*896), dir=(36, 6, 49, 2048), tra=12, a_is_tr=True, dflag='sc1', la=l2, rot=opt('rot') & 8 and i & 1 and (50, 28)) for i in range(8)]
    steps[32]['first'] = True; steps[32]['before'] = mid
    steps[32]['gate'] = lambda: (poll(a, 36, 52, 28, 128, 1, 3, 25, opt('nap', 2)), stamp(a, 3))
    steps[60]['before'] = scale
    steps[60-l2]['peek'] = lambda: poll(a, 36, 53, 8, 512, 1, 216, 217, part=1)
    steps[60-l2]['check'] = lambda: (poll(a, 36, 53, 8, 512, 1, 216, 217, opt('nap', 2), part=2), stamp(a, 5))
    gemm_steps(a, steps, RD2, ACC, TR, DIR, 44, lambda: gemm2_setup(a), only)
    if only: return
    stamp(a, 6)
    a("s_nop 7\ns_nop 4")
    red_write(a, ACC, 8)
    a("s_cbranch_execz K2_NOAR")
    lds_arrive(a, 14, 12, 25); lds_wait(a, 14, 12, 25)
    a("K2_NOAR:")
    red_read(a, ACC, 9)
    for r in range(8): a(f"v_cvt_pk_bf16_f32 v{48+r}, v{ACC+2*r}, v{ACC+2*r+1}")
    a("s_nop 1")
    for p in range(2):
        a(f"v_permlane32_swap_b32 v{48+4*p}, v{50+4*p}\nv_permlane32_swap_b32 v{49+4*p}, v{51+4*p}")
    for p in range(2):
        a(f"buffer_store_dwordx4 {R(48+4*p,4)}, v24, s[80:83], s46 offen offset:{32*p}")

def k2(a):
    head(a, "k2_kernel")
    a("s_cmp_ge_u32 s2, 256\ns_cbranch_scc1 K2_END")
    for k in range(7): stamp(a, k)
    a(f"""s_load_dwordx2 s[14:15], s[0:1], 104
    s_load_dwordx8 s[4:11], s[0:1], 48
    s_load_dwordx2 s[12:13], s[0:1], 32
    s_load_dwordx2 s[28:29], s[0:1], 88
    v_lshrrev_b32 v2, 6, v0
    v_and_b32 v1, 63, v0
    s_mov_b32 s50, {hx(2.0**60)}
    v_readfirstlane_b32 s16, v2
    v_mov_b32 v14, {K2_CNT}
    v_mov_b32 v15, 0
    v_lshlrev_b32 v2, 4, v1
    ds_write2_b32 v14, v15, v15 offset0:0 offset1:1
    ds_write2_b32 v14, v15, v15 offset0:2 offset1:3
    s_waitcnt lgkmcnt(0)
    s_barrier""")
    srd(a, 36, 14, WS_END)
    a("s_cmp_ge_u32 s16, 4\ns_cbranch_scc1 K2_GEMM")
    attention(a)
    a(f"""K2_GEMM:
    s_setprio {opt('prio', 2)}
    s_sub_u32 s16, s16, 4
    s_lshr_b32 s42, s16, 1
    s_and_b32 s43, s16, 1
    s_mul_i32 s44, s16, {RD2*2048}
    s_lshl_b32 s46, s43, 10
    v_add_u32 v6, s46, v2
    v_xor_b32 v7, 1024, v6""")
    tr_addr(a, 12, 1, 3, 44, 42)
    srd(a, 76, 12, 448*896); srd(a, 80, 28, 2048*896)
    gemm1(a)
    gemm_chain(a)
    a("s_add_u32 s16, s16, 4\nK2_FIN:")
    stamp_out(a, 1, 7, 16, 36)
    a("K2_END:\ns_endpgm\nK2_PF:")
    prefetch_w2(a)
    lds_arrive(a, 14, 4, 25)
    gemm2_setup(a)
    gemm_chain(a, (32, F1 + F2))
    a("s_branch K2_G2\nK2_WEND:\ns_waitcnt vmcnt(0)")
    if opt('wu2', 1): a("s_mov_b64 exec, 0\ns_sub_u32 s46, s34, s16\ns_cmp_eq_u32 s46, 31\ns_cbranch_scc1 K2_G3")
    a("s_endpgm")
```

```python
from gen_common import *
import math
RD2 = opt('rd', 12)
K2_ATT = 4*RD2*2048
K2_CNT = K2_ATT + 49152
K2_LDS = K2_CNT + 64
Q, O, KVR, S, P = 16, 48, 112, 176, 208

def max16(a, dst, s, first):
    if first:
        a(f"v_max3_f32 v{dst}, v{s}, v{s+1}, v{s+2}")
        for r in range(3, 15, 2): a(f"v_max3_f32 v{dst}, v{dst}, v{s+r}, v{s+r+1}")
        a(f"v_max_f32 v{dst}, v{dst}, v{s+15}")
    else:
        for r in range(0, 16, 2): a(f"v_max3_f32 v{dst}, v{dst}, v{s+r}, v{s+r+1}")

def halfmax(a, v, t):
    a(f"v_mov_b32 v{t}, v{v}\ns_nop 1\nv_permlane32_swap_b32 v{v}, v{t}\nv_max_f32 v{v}, v{v}, v{t}")

def kv_load(a, slot, pr=False, rot=True):
    if pr: a("s_setprio 3")
    for i in range(4):
        a(f"buffer_load_dwordx4 {R(KVR+16*slot+4*i,4)}, v2, s[20:23], s41 offen offset:{1024*i}")
    a("s_add_u32 s41, s41, 4096")
    if rot and opt('rot') & 1: a("s_cmp_eq_u32 s41, s57\ns_cselect_b32 s41, s56, s41")
    if pr: a(f"s_setprio {opt('aprio')}")

def attention(a):
    a('s_setprio 3')
    a("s_and_b32 s3, s2, 7\ns_lshl_b32 s3, s3, 5\ns_lshr_b32 s17, s2, 3\ns_or_b32 s3, s3, s17" if opt('vid', 1) else "s_mov_b32 s3, s2")
    a(f"""s_lshr_b32 s17, s3, 2
    s_and_b32 s18, s3, 3
    s_lshl_b32 s41, s16, 16
    s_add_u32 s41, s41, {KV}
    s_mov_b32 s40, {KV}
    v_and_b32 v3, 31, v1
    v_lshlrev_b32 v3, 2, v3
    s_lshl_b32 s42, s17, 7
    s_add_u32 s42, s42, {GG}
    v_cmp_lt_u32 s[46:47], 31, v1""")
    a("s_mov_b32 s20, s14\ns_mov_b32 s21, s15\ns_add_u32 s22, s41, 65536\ns_mov_b32 s23, 0x20000")
    if opt('rot') & 1: a("s_bfe_u32 s43, s2, 0x40003"); rotate(a, 41, 56, 43, 4096, 16, 43)
    for i in range(2): a(f"buffer_load_dwordx4 {R(P+4*i,4)}, v2, s[36:39], s40 offen offset:{1024*i}")
    for j in range(4):
        a(f"s_xor_b32 s43, s16, {j}\ns_lshl_b32 s44, s3, 2\ns_add_u32 s43, s43, s44\ns_lshl_b32 s43, s43, 11")
        for i in range(2): a(f"buffer_load_dwordx4 {R(Q+8*j+4*i,4)}, v2, s[36:39], s43 offen offset:{1024*i}")
    a("buffer_load_dword v4, v3, s[36:39], s42 offen")
    for t in range(3): kv_load(a, t)
    red_addr(a, 8, 1, 16, K2_ATT-4096, 12288, 43)
    for j in range(4):
        a(f"s_waitcnt vmcnt({13+2*(3-j)})")
        mfma(a, O+16*j, P, Q+8*j, None); mfma(a, O+16*j, P+4, Q+8*j+4, O+16*j)
    a("s_nop 6")
    for j in range(4):
        max16(a, 5, O+16*j, True); halfmax(a, 5, 6)
        a(f"v_cvt_pk_bf16_f32 v5, -v5, 0\nv_cndmask_b32 v{Q+8*j+6}, v{Q+8*j+6}, v5, s[46:47]")
    for r in range(64): a(f"v_mov_b32 v{O+r}, 0")
    stamp(a, 1)
    a(f"s_setprio {opt('aprio')}")
    a("s_waitcnt vmcnt(8)")
    mfma(a, S, KVR, Q, None); mfma(a, S, KVR+4, Q+4, S)
    a("s_mov_b32 s45, 0\ns_cmp_lg_u32 s45, 0\ns_nop 7\ns_nop 1\nK2_ALOOP:")
    for u in range(16):
        t, j = u >> 2, u & 3
        sc, sn = S + 16*(u & 1), S + 16*((u + 1) & 1)
        pc, pp = P + 8*(u & 1), P + 8*((u + 1) & 1)
        tp, jp = ((u - 1) >> 2) & 3, (u - 1) & 3
        tn, jn = ((u + 1) >> 2) & 3, (u + 1) & 3
        def ex(q, r0=0, r1=4):
            for r in range(r0, r1): a(f"v_exp_f32 v{sc+4*q+r}, v{sc+4*q+r}")
        def cv(q):
            for r in range(2): a(f"v_cvt_pk_bf16_f32 v{pc+2*q+r}, v{sc+4*q+2*r}, v{sc+4*q+2*r+1}")
        if j == 3: a("s_waitcnt vmcnt(8)")
        mfma(a, sn, KVR+16*tn, Q+8*jn, None)
        ex(0)
        mfma(a, sn, KVR+16*tn+4, Q+8*jn+4, sn)
        ex(1); cv(0)
        if u == 0: a("s_cbranch_scc0 K2_AENT")
        mfma(a, O+16*jp, KVR+16*tp+12, pp+4, O+16*jp)
        if u == 0: a("K2_AENT:")
        if j == 0:
            if u: a(f"s_cmp_eq_u32 s45, 3\ns_cbranch_scc1 K2_SK{u}")
            kv_load(a, tp, opt('kvp', 1))
            if u: a(f"K2_SR{u}:")
        ex(2); cv(1); ex(3, 0, 2)
        mfma(a, O+16*j, KVR+16*t+8, pc, O+16*j)
        ex(3, 2, 4); cv(2); cv(3)
        if u == 15: a("s_add_u32 s45, s45, 1\ns_cmp_lt_u32 s45, 4\ns_cbranch_scc1 K2_ALOOP")
    mfma(a, O+48, KVR+48+12, P+12, O+48)
    stamp(a, 2)
    a('s_setprio 3')
    lds_wait(a, 14, 4, 5)
    a("s_nop 7")
    red_write(a, O, 8)
    lds_arrive(a, 14, 8, 5); lds_wait(a, 14, 8, 5)
    stamp(a, 3)
    red_read(a, O, 9)
    a(f"v_mov_b32 v6, v{O+12}\nv_mov_b32 v7, v{O+12}\nv_pk_mul_f32 v[12:13], {R(O,2)}, 0")
    for r in range(2, 16, 2): a(f"v_pk_fma_f32 v[12:13], {R(O+r,2)}, 0, v[12:13]")
    a(f"""v_permlane32_swap_b32 v6, v7
    v_cmp_nlt_f32 vcc, {hx(2.0**-30)}, v7
    v_cmp_ngt_f32 s[48:49], s50, v7
    v_cmp_u_f32 s[52:53], v12, v13
    s_or_b64 vcc, vcc, s[48:49]
    s_or_b64 vcc, vcc, s[52:53]
    {'s_branch' if opt('force') else 's_cbranch_vccnz'} K2_SLOW
    K2_NORM:
    v_rcp_f32 v7, v7
    s_lshr_b32 s43, s17, 1
    s_lshl_b32 s43, s43, 16
    v_mul_f32 v6, v7, v4
    s_lshl_b32 s44, s18, 2
    s_add_u32 s44, s44, s16
    s_lshl_b32 s44, s44, 12
    s_add_u32 s43, s43, s44
    s_and_b32 s44, s17, 1
    s_lshl_b32 s44, s44, 10
    s_add_u32 s43, s43, s44
    s_add_u32 s43, s43, {OF}""")
    for r in range(0, 16, 2):
        a(f"v_pk_mul_f32 {R(O+r,2)}, {R(O+r,2)}, v[6:7] op_sel_hi:[1,0]")
        a(f"v_cvt_pk_bf16_f32 v{P+r//2}, v{O+r}, v{O+r+1}")
    a(f"""v_cndmask_b32 v{P+6}, v{P+6}, 0, s[46:47]
    v_cndmask_b32 v{P+7}, v{P+7}, 0, s[46:47]
    buffer_store_dwordx4 {R(P,4)}, v2, s[36:39], s43 offen sc1
    buffer_store_dwordx4 {R(P+4,4)}, v2, s[36:39], s43 offen offset:2048 sc1
    s_lshl_b32 s43, s3, 5
    s_add_u32 s43, s43, s16
    s_lshl_b32 s43, s43, 2
    s_add_u32 s43, s43, {CO}""")
    signal(a, 36, 43, 15, 5)
    a("s_branch K2_FIN")
    for u in (4, 8, 12): a(f"K2_SK{u}:\ns_waitcnt vmcnt({4 if u == 4 else 0})\ns_branch K2_SR{u}")
    a(f"K2_SLOW:\nv_cndmask_b32 v{Q+6}, v{Q+6}, 0, s[46:47]\nv_mov_b32 v5, 0xff800000\ns_mov_b32 s41, {KV}\ns_mov_b32 s22, {KV+64*4096}")
    a("K2_S1:")
    kv_load(a, 0, rot=False); a("s_waitcnt vmcnt(0)")
    mfma(a, S, KVR, Q, None); mfma(a, S, KVR+4, Q+4, S)
    a("s_nop 7\ns_nop 5"); max16(a, 5, S, False)
    a("s_cmp_lt_u32 s41, s22\ns_cbranch_scc1 K2_S1")
    halfmax(a, 5, 6)
    a(f"""v_and_b32 v6, 0xffff0000, v5
    v_sub_f32 v5, v5, v6
    v_and_b32 v7, 0xffff0000, v5
    v_sub_f32 v5, v5, v7
    v_cvt_pk_bf16_f32 v6, -v6, -v7
    v_cvt_pk_bf16_f32 v5, -v5, 0
    v_cndmask_b32 v{Q+6}, v{Q+6}, v6, s[46:47]
    v_cndmask_b32 v{Q+7}, v{Q+7}, v5, s[46:47]
    s_mov_b32 s41, {KV}""")
    for r in range(16): a(f"v_mov_b32 v{O+r}, 0")
    a("K2_S2:")
    kv_load(a, 0, rot=False); a("s_waitcnt vmcnt(0)")
    mfma(a, S, KVR, Q, None); mfma(a, S, KVR+4, Q+4, S)
    a("s_nop 7\ns_nop 5")
    for r in range(16): a(f"v_exp_f32 v{S+r}, v{S+r}")
    for r in range(8): a(f"v_cvt_pk_bf16_f32 v{P+r}, v{S+2*r}, v{S+2*r+1}")
    a("s_nop 1")
    mfma(a, O, KVR+8, P, O); mfma(a, O, KVR+12, P+4, O)
    a(f"""s_cmp_lt_u32 s41, s22
    s_cbranch_scc1 K2_S2
    s_nop 7
    s_nop 5
    v_mov_b32 v6, v{O+12}
    v_mov_b32 v7, v{O+12}
    s_nop 1
    v_permlane32_swap_b32 v6, v7
    s_nop 1
    s_branch K2_NORM""")

def gemm1(a):
    ACC, TR, DIR = 32, 96, 112
    a(f"""s_and_b32 s17, s2, 7
    s_mul_i32 s18, s17, 49
    s_add_u32 s19, s18, 50
    s_add_u32 s18, s18, 1
    s_lshr_b32 s18, s18, 1
    s_lshr_b32 s19, s19, 1
    s_lshr_b32 s17, s2, 3
    s_add_u32 s17, s17, s18
    s_cmp_ge_u32 s17, s19
    s_cbranch_scc1 K2_PF
    s_mul_i32 s18, s17, 9363
    s_lshr_b32 s18, s18, 16
    s_mul_i32 s19, s18, 7
    s_sub_u32 s19, s17, s19
    s_mul_i32 s40, s16, {512*3584}
    s_lshl_b32 s45, s18, 7
    s_add_u32 s40, s40, s45
    s_lshl_b32 s41, s19, 18
    s_lshl_b32 s46, s16, 16
    s_add_u32 s41, s41, s46
    s_add_u32 s41, s41, {HT}""")
    if opt('rot') & 2:
        a("s_lshl_b32 s46, s18, 1\ns_add_u32 s46, s46, s19\ns_and_b32 s46, s46, 7\ns_lshl_b32 s46, s46, 2")
        rotate(a, 40, 88, 46, 16*3584, 32, 47); rotate(a, 41, 91, 46, 2048, 32, 47)
    dma_voff(a, 4, 1, 3, 3584, 47)
    a("""v_lshrrev_b32 v3, 5, v1
    v_lshlrev_b32 v3, 3, v3
    s_lshl_b32 s46, s42, 6
    s_add_u32 s46, s46, s45""")
    srd(a, 20, 4, 2048*3584); srd(a, 24, 6, 3584)
    for g in range(4): a(f"buffer_load_dwordx2 {R(16+2*g,2)}, v3, s[24:27], s46 offen offset:{16*g}")
    red_addr(a, 8, 1, 16, K2_ATT-4096, 12288, 47)

F1, F2 = opt('f1'), opt('f2')
def gelu_out(a, fill):
    ACC = 32
    stamp(a, 1)
    a("s_nop 7\ns_nop 4")
    red_write(a, ACC, 8)
    lds_arrive(a, 14, 0, 25)
    fill(F1)
    lds_wait(a, 14, 0, 25)
    red_read(a, ACC, 9)
    lds_arrive(a, 14, 4, 25)
    c = 2*math.sqrt(2/math.pi)*math.log2(math.e)
    a(f"""s_mov_b32 s46, {hx(-c*0.044715)}
    v_mov_b32 v24, {hx(-c)}
    s_mul_i32 s56, s19, {112*2048}
    s_lshl_b32 s57, s18, 1
    s_add_u32 s57, s57, s42
    s_lshl_b32 s57, s57, 12
    s_add_u32 s56, s56, s57
    s_add_u32 s56, s56, {UU}
    s_mul_i32 s57, s19, 28
    s_add_u32 s57, s57, s18
    s_lshl_b32 s57, s57, 5
    s_add_u32 s57, s57, s16
    s_lshl_b32 s57, s57, 2
    s_add_u32 s57, s57, {CU}""")
    T = 48
    for r in range(16):
        if r & 1: a(f"v_and_b32 v{T+r}, 0xffff0000, v{16+r//2}")
        else: a(f"v_lshlrev_b32 v{T+r}, 16, v{16+r//2}")
    for r in range(0, 16, 2): a(f"v_pk_add_f32 {R(ACC+r,2)}, {R(ACC+r,2)}, {R(T+r,2)}")
    for r in range(0, 16, 2): a(f"v_pk_mul_f32 {R(T+r,2)}, {R(ACC+r,2)}, {R(ACC+r,2)}")
    for r in range(16): a(f"v_fma_f32 v{T+r}, v{T+r}, s46, v24")
    for r in range(0, 16, 2): a(f"v_pk_mul_f32 {R(T+r,2)}, {R(T+r,2)}, {R(ACC+r,2)}")
    for r in range(16): a(f"v_exp_f32 v{T+r}, v{T+r}")
    for r in range(16): a(f"v_add_f32 v{T+r}, 1.0, v{T+r}")
    for r in range(16): a(f"v_rcp_f32 v{T+r}, v{T+r}")
    for r in range(0, 16, 2): a(f"v_pk_mul_f32 {R(T+r,2)}, {R(T+r,2)}, {R(ACC+r,2)}")
    for r in range(8): a(f"v_cvt_pk_bf16_f32 v{16+r}, v{T+2*r}, v{T+2*r+1}")
    a("buffer_store_dwordx4 v[16:19], v6, s[36:39], s56 offen sc1\nbuffer_store_dwordx4 v[20:23], v6, s[36:39], s56 offen offset:2048 sc1")
    fill(F2)
    signal(a, 36, 57, 15, 25, 2*F2)

def prefetch_w2(a):
    a(f"""s_lshr_b32 s17, s2, 3
    s_cmp_lt_u32 s17, 25
    s_cbranch_scc1 K2_PFD
    s_lshl_b32 s17, s17, 2
    s_add_u32 s17, s17, s16
    s_sub_u32 s17, s17, 100
    s_and_b32 s18, s2, 7""")
    if opt('l2p'):
        srd(a, 20, 4, 2048*3584)
        a(f"""s_lshl_b32 s45, s17, 16
        s_add_u32 s45, s45, {HT+24576}
        s_lshr_b32 s46, s17, 2
        s_lshl_b32 s47, s16, 5
        s_add_u32 s46, s46, s47
        s_add_u32 s46, s46, 11
        s_mul_i32 s46, s46, {16*3584}
        s_mul_i32 s47, s18, 7
        s_lshr_b32 s47, s47, 1
        s_lshl_b32 s47, s47, 7
        s_add_u32 s46, s46, s47
        v_lshrrev_b32 v3, 2, v1
        v_mul_u32_u24 v3, 3584, v3
        v_and_b32 v4, 3, v1
        v_lshl_add_u32 v3, v4, 7, v3
        v_lshlrev_b32 v4, 7, v1""")
        for i in range(8):
            if i % 3 == 0: a(f"buffer_load_dword v{44+i}, v3, s[20:23], s46 offen\ns_add_u32 s46, s46, {112*3584}")
            elif opt('l2p') < 4: a(f"buffer_load_dword v{44+i}, v4, s[36:39], s45 offen\ns_add_u32 s45, s45, 8192")
        if opt('l2p') == 2: a("s_waitcnt vmcnt(0)")
    a(f"""s_mul_i32 s19, s17, {16*896}
    s_lshl_b32 s18, s18, 9
    s_lshl_b32 s17, s17, 18
    s_add_u32 s17, s17, s18
    v_lshrrev_b32 v3, 2, v1
    v_lshlrev_b32 v3, 12, v3
    v_and_b32 v4, 3, v1
    v_lshl_add_u32 v3, v4, 7, v3
    v_lshlrev_b32 v4, 7, v1""")
    srd(a, 20, 8, 1792*4096)
    for i in range(4*(opt('pw2', 3) & 1)): a(f"buffer_load_dword v{32+i}, v3, s[20:23], s17 offen\ns_add_u32 s17, s17, 65536")
    for i in range(opt('pw2', 3) & 2): a(f"buffer_load_dword v{40+i}, v4, s[76:79], s19 offen\ns_add_u32 s19, s19, 6144")
    a("K2_PFD:")

def gemm2_setup(a):
    ACC, TR, DIR = 32, 96, 112
    a(f"""s_lshr_b32 s34, s2, 3
    s_sub_u32 s34, 31, s34
    s_mul_i32 s30, s34, 9363
    s_lshr_b32 s30, s30, 16
    s_mul_i32 s31, s30, 7
    s_sub_u32 s31, s34, s31
    s_and_b32 s45, s2, 7
    s_lshl_b32 s45, s45, 2
    s_add_u32 s30, s30, s45
    s_mul_i32 s32, s16, {448*4096}
    s_lshl_b32 s45, s30, 7
    s_add_u32 s32, s32, s45
    s_mul_i32 s33, s31, {112*2048}
    s_mul_i32 s46, s16, {28*2048}
    s_add_u32 s33, s33, s46
    s_add_u32 s33, s33, {UU}
    s_mul_i32 s48, s16, {112*896}
    s_lshl_b32 s46, s31, 7
    s_add_u32 s48, s48, s46
    s_lshl_b32 s49, s30, 16
    s_lshl_b32 s46, s16, 14
    s_add_u32 s49, s49, s46
    s_add_u32 s49, s49, {OF}
    s_lshl_b32 s52, s31, 2
    s_add_u32 s52, s52, s16
    s_mul_i32 s52, s52, 896
    s_add_u32 s52, s52, {CU}
    s_lshl_b32 s53, s30, 3
    s_add_u32 s53, s53, s16
    s_lshl_b32 s53, s53, 7
    s_add_u32 s53, s53, {CO}
    s_lshl_b32 s46, s42, 10
    v_add_u32 v28, s46, v2
    v_xor_b32 v29, 1024, v28""")
    if opt('rot') & 4:
        a("s_and_b32 s46, s30, 3\ns_mul_i32 s46, s46, 7\ns_lshl_b32 s47, s31, 2\ns_add_u32 s46, s46, s47\ns_sub_u32 s47, s46, 28\ns_cselect_b32 s46, s46, s47")
        rotate(a, 32, 93, 46, 16*4096, 28, 47); rotate(a, 33, 58, 46, 2048, 28, 47)
    if opt('rot') & 8:
        a("s_add_u32 s46, s30, s31\ns_and_b32 s46, s46, 3")
        rotate(a, 48, 50, 46, 28*896, 4, 47); rotate(a, 49, 28, 46, 4096, 4, 47)
    dma_voff(a, 214, 1, 3, 4096, 47)
    srd(a, 84, 8, 1792*4096); srd(a, 24, 10, 4096)
    a(f"""s_cmp_lt_u32 s34, 28
    s_cselect_b32 s86, s86, 0
    v_and_b32 v3, 31, v1
    s_lshl_b32 s46, s43, 5
    v_add_u32 v213, s46, v3
    v_lshlrev_b32 v208, 2, v213
    v_xor_b32 v209, 128, v208
    v_lshlrev_b32 v212, 1, v213
    s_lshl_b32 s46, s30, 8
    s_add_u32 s46, s46, {GG}
    buffer_load_dword v208, v208, s[36:39], s46 offen
    buffer_load_dword v209, v209, s[36:39], s46 offen
    buffer_load_ushort v212, v212, s[24:27], s45 offen""")
    tr_addr(a, 26, 1, 3, 44, 43)
    dma_voff(a, 30, 1, 3, 896, 47)

def gemm_chain(a, only=None):
    ACC, TR, DIR = 32, 96, 112
    def mid(fill):
        gelu_out(a, fill)
        a(f"K2_G2:\ns_setprio {opt('p2', 2)}")
        stamp(a, 2)
        a("s_cmp_ge_u32 s34, 28\ns_cbranch_scc1 K2_WEND\nK2_G3:")
        red_addr(a, 8, 1, 16, 0, RD2*2048, 47)
    def scale(fill):
        stamp(a, 4)
        a("v_sub_f32 v208, 1.0, v208\nv_sub_f32 v210, 1.0, v209\ns_nop 7\ns_nop 1")
        for j in range(4):
            for r in range(0, 16, 2):
                a(f"v_pk_mul_f32 {R(ACC+16*j+r,2)}, {R(ACC+16*j+r,2)}, {R(210 if j & 1 else 208,2)} op_sel_hi:[1,0]")
        a(f"""v_lshlrev_b32 v212, 16, v212
        v_mul_f32 v212, v212, v208
        v_mul_u32_u24 v24, 896, v213
        v_lshrrev_b32 v3, 5, v1
        v_lshl_add_u32 v24, v3, 4, v24
        s_mul_i32 s46, s30, {64*896}
        s_lshl_b32 s47, s31, 7
        s_add_u32 s46, s46, s47
        s_lshl_b32 s47, s42, 6
        s_add_u32 s46, s46, s47""")
        for r in range(0, 16, 2):
            a(f"v_pk_add_f32 {R(ACC+r,2)}, {R(ACC+r,2)}, v[212:213] op_sel_hi:[1,0]")
    l0, l1, l2, tp = opt('l0', 12), opt('l1', 6), opt('l2', 6), opt('tp', 3)
    steps = [dict(dma=(20, 4, 40, 16*3584), dir=(36, 6, 41, 2048), tra=12, a_is_tr=True, la=max(l1, l0 - i//tp), rot=opt('rot') & 2 and (88, 91)) for i in range(32)]
    steps += [dict(dma=(84, 214, 32, 16*4096), dir=(36, 28, 33, 2048), tra=26, a_is_tr=False, dflag='sc1', la=l2, rot=opt('rot') & 4 and (93, 58)) for i in range(28)]
    steps += [dict(dma=(76, 30, 48, (12 if i & 1 else 16)*896), dir=(36, 6, 49, 2048), tra=12, a_is_tr=True, dflag='sc1', la=l2, rot=opt('rot') & 8 and i & 1 and (50, 28)) for i in range(8)]
    steps[32]['first'] = True; steps[32]['before'] = mid
    steps[32]['gate'] = lambda: (poll(a, 36, 52, 28, 128, 1, 3, 25, opt('nap', 2)), stamp(a, 3))
    steps[60]['before'] = scale
    steps[60-l2]['peek'] = lambda: poll(a, 36, 53, 8, 512, 1, 216, 217, part=1)
    steps[60-l2]['check'] = lambda: (poll(a, 36, 53, 8, 512, 1, 216, 217, opt('nap', 2), part=2), stamp(a, 5))
    gemm_steps(a, steps, RD2, ACC, TR, DIR, 44, lambda: gemm2_setup(a), only)
    if only: return
    stamp(a, 6)
    a("s_nop 7\ns_nop 4")
    red_write(a, ACC, 8)
    a("s_cbranch_execz K2_NOAR")
    lds_arrive(a, 14, 12, 25); lds_wait(a, 14, 12, 25)
    a("K2_NOAR:")
    red_read(a, ACC, 9)
    for r in range(8): a(f"v_cvt_pk_bf16_f32 v{48+r}, v{ACC+2*r}, v{ACC+2*r+1}")
    a("s_nop 1")
    for p in range(2):
        a(f"v_permlane32_swap_b32 v{48+4*p}, v{50+4*p}\nv_permlane32_swap_b32 v{49+4*p}, v{51+4*p}")
    for p in range(2):
        a(f"buffer_store_dwordx4 {R(48+4*p,4)}, v24, s[80:83], s46 offen offset:{32*p}")

def k2(a):
    head(a, "k2_kernel")
    a("s_cmp_ge_u32 s2, 256\ns_cbranch_scc1 K2_END")
    for k in range(7): stamp(a, k)
    a(f"""s_load_dwordx2 s[14:15], s[0:1], 104
    s_load_dwordx8 s[4:11], s[0:1], 48
    s_load_dwordx2 s[12:13], s[0:1], 32
    s_load_dwordx2 s[28:29], s[0:1], 88
    v_lshrrev_b32 v2, 6, v0
    v_and_b32 v1, 63, v0
    s_mov_b32 s50, {hx(2.0**60)}
    v_readfirstlane_b32 s16, v2
    v_mov_b32 v14, {K2_CNT}
    v_mov_b32 v15, 0
    v_lshlrev_b32 v2, 4, v1
    ds_write2_b32 v14, v15, v15 offset0:0 offset1:1
    ds_write2_b32 v14, v15, v15 offset0:2 offset1:3
    s_waitcnt lgkmcnt(0)
    s_barrier""")
    srd(a, 36, 14, WS_END)
    a("s_cmp_ge_u32 s16, 4\ns_cbranch_scc1 K2_GEMM")
    attention(a)
    a(f"""K2_GEMM:
    s_setprio {opt('prio', 2)}
    s_sub_u32 s16, s16, 4
    s_lshr_b32 s42, s16, 1
    s_and_b32 s43, s16, 1
    s_mul_i32 s44, s16, {RD2*2048}
    s_lshl_b32 s46, s43, 10
    v_add_u32 v6, s46, v2
    v_xor_b32 v7, 1024, v6""")
    tr_addr(a, 12, 1, 3, 44, 42)
    srd(a, 76, 12, 448*896); srd(a, 80, 28, 2048*896)
    gemm1(a)
    gemm_chain(a)
    a("s_add_u32 s16, s16, 4\nK2_FIN:")
    stamp_out(a, 1, 7, 16, 36)
    a("K2_END:\ns_endpgm\nK2_PF:")
    prefetch_w2(a)
    lds_arrive(a, 14, 4, 25)
    gemm2_setup(a)
    gemm_chain(a, (32, F1 + F2))
    a("s_branch K2_G2\nK2_WEND:\ns_waitcnt vmcnt(0)")
    if opt('wu2'): a("v_mov_b32 v24, 0\nv_mov_b32 v216, 0\ns_mov_b64 exec, 0\ns_sub_u32 s46, s34, s16\ns_cmp_eq_u32 s46, 31\ns_cbranch_scc1 K2_G3")
    a("s_endpgm")
```
